```python
import torch

def _softmax(x, axis=-1):
    return torch.softmax(x, dim=axis)
def _gelu(x):
    return torch.nn.functional.gelu(x, approximate="tanh")
def _silu(x):
    return torch.nn.functional.silu(x)
def _sigmoid(x):
    return torch.sigmoid(x)
def _layernorm(x, axis=-1, eps=1e-5):
    m = x.mean(dim=axis, keepdim=True)
    v = x.var(dim=axis, keepdim=True, unbiased=False)
    return (x - m) / torch.sqrt(v + eps)
def _scatter_add(tgt, idx, src, axis=0):
    return tgt.clone().index_add_(axis, idx, src)
def _segment_sum(src, seg, n):
    out = torch.zeros((n,) + src.shape[1:], dtype=src.dtype)
    return out.index_add_(0, seg, src)
def _pad(x, pw):
    flat = tuple(v for pair in reversed(pw) for v in pair)
    return torch.nn.functional.pad(x, flat)

kernel_name = 'recurrent_scan__ssm_conv_s5__glu_gated_reglu__prompt'

def setup_inputs():

    _w = (lambda a: (lambda t: t.to(torch.bfloat16) if t.is_floating_point() else t)(torch.as_tensor(a)))
    def _A_setup():
        B, S, D = 1, 2048, 512
        P = D
        Lambda_re = -0.5 * (lambda _x: torch.exp(torch.as_tensor(_x)))((lambda *s: torch.randn(*s, dtype=torch.bfloat16) * 0.8)(P))
        Lambda_im = (lambda *s: torch.randn(*s, dtype=torch.bfloat16) * 0.8)(P) * 1.0
        B_re = (lambda *s: torch.randn(*s, dtype=torch.bfloat16) * 0.8)(P, D) * (D ** -0.5)
        B_im = (lambda *s: torch.randn(*s, dtype=torch.bfloat16) * 0.8)(P, D) * (D ** -0.5)
        C_re = (lambda *s: torch.randn(*s, dtype=torch.bfloat16) * 0.8)(D, P) * (P ** -0.5)
        C_im = (lambda *s: torch.randn(*s, dtype=torch.bfloat16) * 0.8)(D, P) * (P ** -0.5)
        log_dt = (lambda *s: torch.randn(*s, dtype=torch.bfloat16) * 0.8)(P) * 0.3 - 2.0
        Dskip = (lambda *s: torch.randn(*s, dtype=torch.bfloat16) * 0.8)(D)
        return {
            "x": _w((lambda *s: torch.randn(*s, dtype=torch.bfloat16) * 0.05)(B, S, D)),
            "Lambda_re": _w(Lambda_re),
            "Lambda_im": _w(Lambda_im),
            "B_re": _w(B_re),
            "B_im": _w(B_im),
            "C_re": _w(C_re),
            "C_im": _w(C_im),
            "log_dt": _w(log_dt),
            "Dskip": _w(Dskip),
        }
    _A_in = _A_setup()

    def _B_setup():
        B, S, D, F = 1, 2048, 512, 1376
        return {
            "x": _w((lambda *s: torch.randn(*s, dtype=torch.bfloat16) * 0.05)(B, S, D)),
            "W_gate": _w((lambda *s: torch.randn(*s, dtype=torch.bfloat16) * 0.2)(D, F) * (2.0 / D) ** 0.5),
            "W_up": _w((lambda *s: torch.randn(*s, dtype=torch.bfloat16) * 0.2)(D, F) * (2.0 / D) ** 0.5),
            "W_down": _w((lambda *s: torch.randn(*s, dtype=torch.bfloat16) * 0.2)(F, D) * (1.0 / F) ** 0.5),
        }
    _B_in = _B_setup()

    return {
        "A_x": _A_in["x"],
        "A_Lambda_re": _A_in["Lambda_re"],
        "A_Lambda_im": _A_in["Lambda_im"],
        "A_B_re": _A_in["B_re"],
        "A_B_im": _A_in["B_im"],
        "A_C_re": _A_in["C_re"],
        "A_C_im": _A_in["C_im"],
        "A_log_dt": _A_in["log_dt"],
        "A_Dskip": _A_in["Dskip"],
        "B_x": _B_in["x"],
        "B_W_gate": _B_in["W_gate"],
        "B_W_up": _B_in["W_up"],
        "B_W_down": _B_in["W_down"],
    }

def reference(A_x, A_Lambda_re, A_Lambda_im, A_B_re, A_B_im, A_C_re, A_C_im, A_log_dt, A_Dskip, B_x, B_W_gate, B_W_up, B_W_down):
    def _A_ref(x, Lambda_re, Lambda_im, B_re, B_im, C_re, C_im, log_dt, Dskip):
        Bsz, L, H = x.shape
        Lam = Lambda_re + 1j * Lambda_im
        Bmat = B_re + 1j * B_im
        Cmat = C_re + 1j * C_im
        dt = torch.exp(log_dt)
        Lam_bar = torch.exp(dt * Lam)
        B_bar = ((Lam_bar - 1.0) / Lam)[:, None] * Bmat
        Bu = torch.einsum("bld,pd->blp", x + 0j, B_bar)
        h = torch.zeros_like(Bu[:, 0, :])
        hs = []
        for t in range(L):
            h = Lam_bar[None, :] * h + Bu[:, t, :]
            hs.append(h)
        hseq = torch.stack(hs, 1)
        y = 2.0 * torch.einsum("blp,dp->bld", hseq, Cmat).real + x * Dskip[None, None, :]
        return y

    def _B_ref(x, W_gate, W_up, W_down):
        gate = torch.einsum("bsd,df->bsf", x, W_gate)
        up = torch.einsum("bsd,df->bsf", x, W_up)
        gate = gate * (lambda x, dt: x.to(dt))(gate > 0, gate.dtype)
        h = gate * up
        return torch.einsum("bsf,fd->bsd", h, W_down)

    x = A_x
    xn = _layernorm(x, axis=-1)
    s = _A_ref(xn, A_Lambda_re, A_Lambda_im, A_B_re, A_B_im, A_C_re, A_C_im, A_log_dt, A_Dskip)
    g = _silu(_B_ref(xn, B_W_gate, B_W_up, B_W_down))
    return x + s * g
```

```python
import re, sys

REG_RE = re.compile(r'^(-|\|)?(?:abs\()?([vas])(?:(\d+)|\[(\d+):(\d+)\])\)?\|?$')

def parse_operand(tok):
    tok = tok.strip()
    m = REG_RE.match(tok)
    if m:
        k = m.group(2)
        if m.group(3) is not None:
            return [(k, int(m.group(3)))]
        return [(k, i) for i in range(int(m.group(4)), int(m.group(5)) + 1)]
    if tok in ('vcc',): return [('x', 'vcc')]
    if tok in ('vcc_lo', 'vcc_hi'): return [('x', 'vcc')]
    if tok in ('exec', 'exec_lo', 'exec_hi'): return [('x', 'exec')]
    if tok == 'm0': return [('x', 'm0')]
    return []

def split_ops(rest):
    ops, depth, cur = [], 0, ''
    for ch in rest:
        if ch in '[(': depth += 1
        if ch in '])': depth -= 1
        if ch == ',' and depth == 0:
            ops.append(cur); cur = ''
        else:
            cur += ch
    if cur.strip(): ops.append(cur)
    return ops

TRANS = ('v_exp_f32', 'v_log_f32', 'v_rcp_f32', 'v_rsq_f32', 'v_sqrt_f32', 'v_sin_f32', 'v_cos_f32', 'v_rcp_iflag_f32')

class Ins:
    __slots__ = ('text', 'mn', 'kind', 'w', 'r', 'srcc', 'srcab', 'passes', 'states', 'dpp', 'label', 'target',
                 'lds_dma', 'wide_store_data', 'line', 'sconst', 'uncond')
    def __init__(self, text):
        self.text = text
        self.label = None; self.target = None; self.uncond = False
        self.w = set(); self.r = set(); self.srcc = set(); self.srcab = set(); self.passes = 0
        self.states = 1; self.dpp = False; self.lds_dma = False; self.wide_store_data = set(); self.sconst = set()
        t = text.split(';')[0].strip()
        if t.endswith(':'):
            self.kind = 'label'; self.label = t[:-1]; self.mn = ''; self.states = 0; return
        if not t or t.startswith('.'):
            self.kind = 'none'; self.mn = ''; self.states = 0; return
        parts = t.split(None, 1)
        mn = parts[0]; self.mn = mn
        rest = parts[1] if len(parts) > 1 else ''
        ops = split_ops(rest)
        mods = ''
        if ops:
            last = ops[-1].strip().split(None, 1)
            ops[-1] = last[0]
            mods = last[1] if len(last) > 1 else ''
        O = [parse_operand(o) for o in ops]
        base = mn.replace('_e32', '').replace('_e64', '').replace('_dpp', '')
        if mn.startswith('v_mfma'):
            self.kind = 'mfma'
            self.w = set(O[0]); self.srcab = set(O[1]) | set(O[2]); self.srcc = set(O[3])
            self.r = self.srcab | self.srcc
            self.passes = 8 if '32x32x16' in mn else 4 if '16x16x32' in mn else None
            assert self.passes, mn
        elif mn.startswith('v_'):
            self.kind = 'valu'
            if '_dpp' in mn or 'row_' in mods or 'quad_perm' in mods: self.dpp = True
            if base.startswith('v_cmp'):
                self.w = set(O[0])
                for o in O[1:]: self.r |= set(o)
                if base.startswith('v_cmpx'): self.w.add(('x', 'exec'))
            elif base in ('v_permlane16_swap_b32', 'v_permlane32_swap_b32'):
                self.w = set(O[0]) | set(O[1]); self.r = set(self.w)
            elif base in ('v_add_co_u32', 'v_sub_co_u32', 'v_addc_co_u32', 'v_subb_co_u32'):
                self.w = set(O[0]) | set(O[1])
                for o in O[2:]: self.r |= set(o)
            else:
                self.w = set(O[0])
                for o in O[1:]: self.r |= set(o)
                if base in ('v_fmac_f32', 'v_dot2c_f32_bf16', 'v_pk_fmac_f16', 'v_writelane_b32') or self.dpp:
                    self.r |= set(O[0])
            self.sconst = {x for x in self.r if x[0] == 's' or x == ('x', 'vcc')}
        elif mn.startswith('buffer_') or mn.startswith('global_'):
            self.kind = 'vmem'
            if mn in ('buffer_wbl2', 'buffer_inv'):
                pass
            elif 'lds' in mods.split():
                self.lds_dma = True
                for o in O: self.r |= set(o)
                self.r.add(('x', 'm0'))
            elif '_load_' in mn:
                self.w = set(O[0])
                for o in O[1:]: self.r |= set(o)
                if 'd16' in mn: self.r |= set(O[0])
            elif '_store_' in mn:
                for o in O: self.r |= set(o)
                if 'x4' in mn or 'x3' in mn:
                    self.wide_store_data = set(O[0]) if mn.startswith('buffer_') else set(O[1])
            elif '_atomic_' in mn:
                for o in O: self.r |= set(o)
                if 'sc0' in mods.split():
                    self.w = set(O[0]) if mn.startswith('buffer_') else set(O[0])
            else:
                raise ValueError(mn)
        elif mn.startswith('ds_'):
            self.kind = 'ds'
            if mn.startswith('ds_read') or mn.startswith('ds_bpermute') or mn.startswith('ds_swizzle') or mn.startswith('ds_permute'):
                self.w = set(O[0])
                for o in O[1:]: self.r |= set(o)
            else:
                for o in O: self.r |= set(o)
        elif mn.startswith('s_'):
            self.kind = 'salu'
            if mn == 's_nop':
                self.states = int(ops[0], 0) + 1
            elif mn in ('s_branch',) or mn.startswith('s_cbranch'):
                self.kind = 'branch'; self.target = ops[0].strip(); self.uncond = (mn == 's_branch')
            elif mn == 's_endpgm':
                self.kind = 'end'; self.uncond = True
            elif mn.startswith('s_load') or mn in ('s_memtime', 's_memrealtime'):
                self.kind = 'smem'
                self.w = set(O[0])
                for o in O[1:]: self.r |= set(o)
            elif mn.startswith('s_cmp') or mn.startswith('s_bitcmp') or mn in ('s_waitcnt', 's_barrier', 's_setprio', 's_sleep'):
                for o in O: self.r |= set(o)
            else:
                self.w = set(O[0])
                for o in O[1:]: self.r |= set(o)
                if 'saveexec' in mn: self.w.add(('x', 'exec'))
        else:
            raise ValueError("unknown instr: " + text)

def is_vgpr(x): return x[0] in ('v', 'a')

def hazard_need(p, c):
    need = 0
    pv = {x for x in p.w if is_vgpr(x)}
    ps = {x for x in p.w if x[0] == 's' or x == ('x', 'vcc')}
    if p.kind == 'valu':
        isdot = p.mn.startswith('v_dot')
        if c.kind == 'mfma' and pv & c.r: need = max(need, 3 if isdot else 2)
        if c.kind == 'vmem' and ps & c.r: need = max(need, 5)
        if c.kind == 'valu':
            if ps & c.sconst: need = max(need, 4 if c.mn.startswith(('v_readlane', 'v_writelane')) else 2)
            if c.mn.startswith(('v_readlane', 'v_readfirstlane')) and pv & c.r: need = max(need, 1)
            if c.dpp and pv & c.r: need = max(need, 2)
            if c.mn.startswith('v_permlane') and pv & c.r: need = max(need, 2)
            if p.mn.replace('_e32', '').replace('_e64', '') in TRANS and (pv & c.r or pv & c.w): need = max(need, 1)
            if isdot and (pv & (c.r | c.w)):
                same = (c.mn.split('_e')[0] == p.mn.split('_e')[0])
                if same:
                    ops = split_ops(c.text.split(';')[0].strip().split(None, 1)[1])
                    ab = set(parse_operand(ops[1].split()[0])) | set(parse_operand(ops[2].split()[0]))
                    if pv & ab: need = max(need, 3)
                else:
                    need = max(need, 3)
            if ('x', 'exec') in p.w: need = max(need, 5)
        if isdot and c.kind in ('vmem', 'ds') and pv & c.r: need = max(need, 3)
        if ('x', 'exec') in p.w and c.kind == 'mfma': need = max(need, 4)
    if p.kind == 'mfma':
        P = p.passes
        if c.kind == 'mfma':
            if p.w & c.srcab: need = max(need, P + 4)
            if p.w & c.srcc:
                if not (p.w == c.srcc and c.passes == P): need = max(need, P + 2)
            elif p.w & c.w: need = max(need, P + 4)
        elif c.kind in ('valu', 'vmem', 'ds'):
            if p.w & (c.r | c.w): need = max(need, P + 4)
        if c.kind == 'valu' and p.srcc & c.w: need = max(need, P - 1)
    if p.kind == 'salu' and ('x', 'm0') in p.w and c.kind == 'vmem' and c.lds_dma: need = max(need, 1)
    if p.kind == 'vmem' and p.wide_store_data:
        if p.wide_store_data & c.w: need = max(need, 2 if c.kind in ('valu', 'mfma') else 1)
    return need

def check_hazards(lines, name='', fix=False):
    while True:
        ins = [Ins(l) for l in lines]
        labels = {x.label: i for i, x in enumerate(ins) if x.kind == 'label'}
        preds = [[] for _ in ins]
        for i, x in enumerate(ins):
            if i + 1 < len(ins) and not x.uncond: preds[i + 1].append(i)
            if x.kind == 'branch':
                assert x.target in labels, x.target
                preds[labels[x.target]].append(i)
        probs = []
        for ci, c in enumerate(ins):
            if c.kind in ('label', 'none', 'branch', 'end', 'smem') or c.mn in ('s_nop', 's_waitcnt', 's_barrier'): continue
            if c.kind == 'salu' and not c.w: continue
            worst = 0; who = None
            stack = [(pi, 0) for pi in preds[ci]]
            seen = {}
            while stack:
                pi, dist = stack.pop()
                if dist >= 13: continue
                if seen.get(pi, 99) <= dist: continue
                seen[pi] = dist
                p = ins[pi]
                if p.states and p.kind not in ('branch', 'end'):
                    n = hazard_need(p, c)
                    if n - dist > worst: worst = n - dist; who = pi
                for q in preds[pi]: stack.append((q, dist + p.states))
            if worst > 0: probs.append((ci, worst, who))
        if not fix or not probs:
            return [(lines[c], w, lines[p]) for c, w, p in probs], lines
        out = list(lines)
        for ci, w, who in reversed(probs):
            out.insert(ci, f"s_nop {w-1}")
        lines = out

def check_waits(lines):
    vmq, lgq = [], []
    probs = []
    for l in lines:
        x = Ins(l)
        if x.kind == 'label' and x.label.startswith('RESET'):
            vmq, lgq = [], []
        if x.mn == 's_waitcnt':
            m = re.search(r'vmcnt\((\d+)\)', l)
            if m:
                n = int(m.group(1));
                while len(vmq) > n: vmq.pop(0)
            m = re.search(r'lgkmcnt\((\d+)\)', l)
            if m:
                n = int(m.group(1))
                if n > 0 and any(k == 'smem' for k, _ in lgq): probs.append(("counted lgkm with smem outstanding", l))
                while len(lgq) > n: lgq.pop(0)
            continue
        touched = x.r | x.w
        for q in vmq:
            if q & touched: probs.append(("vm", l))
        for _, q in lgq:
            if q & touched: probs.append(("lgkm", l))
        if x.kind == 'vmem' and x.mn not in ('buffer_wbl2', 'buffer_inv'): vmq.append(set(x.w))
        if x.kind == 'ds': lgq.append(('ds', set(x.w)))
        if x.kind == 'smem': lgq.append(('smem', set(x.w)))
    return probs

class Kern:
    def __init__(self, name, vgpr, agpr, sgpr=96):
        self.name = name; self.L = []; self.vgpr = vgpr; self.agpr = agpr; self.sgpr = sgpr
        self.nvm = 0; self.nds = 0
        self.vm_done = -1; self.ds_done = -1
    def __call__(self, s):
        for l in s.strip().split('\n'):
            l = l.strip()
            if l: self.L.append(l)
    def vm(self, s):
        self(s); self.nvm += 1; return self.nvm - 1
    def ds(self, s):
        self(s); self.nds += 1; return self.nds - 1
    def wait(self, vm=None, ds=None, force=False):
        parts = []
        if vm is not None and (vm > self.vm_done or force):
            n = self.nvm - 1 - vm
            assert n >= 0
            if n <= 63:
                parts.append(f"vmcnt({n})"); self.vm_done = max(self.vm_done, vm)
            else:
                parts.append("vmcnt(63)")
        if ds is not None and (ds > self.ds_done or force):
            n = self.nds - 1 - ds
            assert n >= 0
            n = min(n, 15)
            parts.append(f"lgkmcnt({n})"); self.ds_done = max(self.ds_done, self.nds - 1 - n)
        if parts: self("s_waitcnt " + " ".join(parts))
    def wait_all_ds(self):
        if self.nds - 1 > self.ds_done:
            self("s_waitcnt lgkmcnt(0)"); self.ds_done = self.nds - 1
    def wait_all_vm(self):
        self("s_waitcnt vmcnt(0)"); self.vm_done = self.nvm - 1
    def state(self): return (self.nvm, self.nds, self.vm_done, self.ds_done)
    def restore(self, st): self.nvm, self.nds, self.vm_done, self.ds_done = st
    def finish(self, fix=True):
        probs, lines = check_hazards(self.L, self.name, fix=fix)
        for p in probs: print("HAZARD", self.name, p, file=sys.stderr)
        nfix = len(lines) - len(self.L)
        self.L = lines
        for p in check_waits(self.L): print("WAIT?", self.name, p, file=sys.stderr)
        return nfix
    def text(self):
        n = self.name
        out = [f".globl {n}", ".p2align 8", f".type {n},@function", f"{n}:"]
        for l in self.L:
            out.append(l if l.endswith(':') else "    " + l)
        return "\n".join(out)
    def desc(self):
        acc_off = (self.vgpr + 3) // 4 * 4
        nfv = acc_off + self.agpr if self.agpr else self.vgpr
        return "\n".join([".p2align 6", f".amdhsa_kernel {self.name}",
            f"  .amdhsa_next_free_vgpr {nfv}", f"  .amdhsa_next_free_sgpr {self.sgpr}",
            f"  .amdhsa_accum_offset {acc_off}", "  .amdhsa_group_segment_fixed_size 0",
            "  .amdhsa_kernarg_size 128", "  .amdhsa_user_sgpr_count 2",
            "  .amdhsa_user_sgpr_kernarg_segment_ptr 1", "  .amdhsa_system_sgpr_workgroup_id_x 1",
            "  .amdhsa_float_denorm_mode_32 3",
            ".end_amdhsa_kernel"])

def write_file(path, header_lines, kerns):
    out = list(header_lines)
    out.append('.amdgcn_target "amdgcn-amd-amdhsa--gfx950"')
    out.append(".text")
    for k in kerns: out.append(k.text())
    out.append('.section .rodata,"a"')
    for k in kerns: out.append(k.desc())
    open(path, "w").write("\n".join(out) + "\n")
```

```python
from asmgen import *
from layout import *

def gen_k2(name="ssm_k2_kernel", mapping=0, rotate=True):
    k = Kern(name, vgpr=160, agpr=0, sgpr=96)
    E = k
    ACC = 0
    vTID = 0
    vLANE16 = 1
    vDMA0, vDMA1 = 2, 3
    vRD = [4, 5, 6, 7]
    vT = [8, 9, 10, 11, 12, 13, 14, 15]
    ACC = 16
    AR = 48
    BF = 112
    XV = 144
    vDS = 152
    vOUT = 153
    vRED_W = 154; vRED_R = 155
    sB = 8; sA = 12; sX = 16; sO = 20; sD = 24
    sW, sLT, sKG, sRT, sCB, sROT = 28, 29, 30, 31, 32, 33
    sAB, sBB, sM0B = 34, 35, 36
    sT0, sT1, sT2, sT3 = 37, 38, 39, 40
    sP = 44
    E("s_cmp_ge_u32 s2, 256")
    E("s_cbranch_scc1 K2_END")
    E(f"s_load_dwordx2 s[44:45], s[0:1], 0")
    E(f"s_load_dwordx4 s[48:51], s[0:1], 40")
    E(f"s_load_dwordx2 s[46:47], s[0:1], 64")
    E(f"s_load_dwordx4 s[52:55], s[0:1], 96")
    E(f"s_load_dwordx2 s[56:57], s[0:1], 120")
    E(f"v_lshrrev_b32 v{vT[0]}, 6, v0")
    E(f"v_and_b32 v{vT[1]}, 63, v0")
    E(f"v_readfirstlane_b32 s{sW}, v{vT[0]}")
    E(f"v_lshlrev_b32 v{vLANE16}, 4, v{vT[1]}")
    E(f"s_and_b32 s{sLT}, s{sW}, 1")
    E(f"s_lshr_b32 s{sKG}, s{sW}, 1")
    E(f"s_and_b32 s{sT0}, s2, 7")
    E(f"s_lshr_b32 s{sT1}, s2, 3")
    if mapping == 0:
        E(f"s_and_b32 s{sT2}, s{sT1}, 3")
        E(f"s_lshl_b32 s{sRT}, s{sT0}, 2")
        E(f"s_add_u32 s{sRT}, s{sRT}, s{sT2}")
        E(f"s_lshr_b32 s{sCB}, s{sT1}, 2")
        E(f"s_lshl_b32 s{sROT}, s{sT2}, 1")
        E(f"s_add_u32 s{sROT}, s{sROT}, s{sCB}")
    else:
        E(f"s_and_b32 s{sT2}, s{sT1}, 7")
        E(f"s_lshr_b32 s{sRT}, s{sT0}, 1")
        E(f"s_lshl_b32 s{sRT}, s{sRT}, 3")
        E(f"s_add_u32 s{sRT}, s{sRT}, s{sT2}")
        E(f"s_and_b32 s{sCB}, s{sT0}, 1")
        E(f"s_lshl_b32 s{sCB}, s{sCB}, 2")
        E(f"s_lshr_b32 s{sT3}, s{sT1}, 3")
        E(f"s_add_u32 s{sCB}, s{sCB}, s{sT3}")
        E(f"s_lshl_b32 s{sROT}, s{sT3}, 1")
        E(f"s_add_u32 s{sROT}, s{sROT}, s{sT2}")
    E(f"s_and_b32 s{sROT}, s{sROT}, 7")
    if not rotate: E(f"s_mov_b32 s{sROT}, 0")
    E(f"s_lshl_b32 s{sM0B}, s{sKG}, 15")
    E(f"s_lshl_b32 s{sT0}, s{sLT}, 12")
    E(f"s_add_u32 s{sM0B}, s{sM0B}, s{sT0}")
    E(f"s_lshl_b32 s{sT1}, s{sRT}, 1")
    E(f"s_add_u32 s{sT1}, s{sT1}, s{sLT}")
    E(f"v_lshrrev_b32 v{vT[2]}, 3, v{vT[1]}")
    E(f"v_and_b32 v{vT[3]}, 7, v{vT[1]}")
    E(f"v_lshrrev_b32 v{vT[4]}, 5, v{vT[1]}")
    E("s_waitcnt lgkmcnt(0)")
    for (s, lo, n) in ((sA, 56, WS_SIZE), (sX, 44, 2097152), (sO, 54, 4194304), (sD, 46, 1024)):
        E(f"s_mov_b32 s{s}, s{lo}"); E(f"s_mov_b32 s{s+1}, s{lo+1}"); E(f"s_mov_b32 s{s+2}, {n}"); E(f"s_mov_b32 s{s+3}, 0x00020000")
    E(f"s_mov_b32 s{sB+3}, 0x00020000")
    E(f"s_cmp_ge_u32 s{sKG}, 2")
    E("s_cbranch_scc1 K2_G4")
    st0 = k.state()

    def zero_acc():
        for i in range(32): E(f"v_mov_b32 v{ACC+i}, 0")

    def stage_index(t, mod):
        E(f"s_add_u32 s{sT2}, s{sROT}, {t}")
        E(f"s_sub_u32 s{sT3}, s{sT2}, {mod}")
        E(f"s_cmp_ge_u32 s{sT2}, {mod}")
        E(f"s_cselect_b32 s{sT2}, s{sT3}, s{sT2}")

    def epilogue_loads():
        E(f"v_and_b32 v{vT[0]}, 63, v0")
        E(f"v_lshrrev_b32 v{vT[4]}, 5, v{vT[0]}")
        E(f"v_and_b32 v{vT[0]}, 31, v{vT[0]}")
        E(f"s_lshl_b32 s{sT0}, s{sRT}, 6")
        E(f"s_lshl_b32 s{sT1}, s{sLT}, 5")
        E(f"s_add_u32 s{sT0}, s{sT0}, s{sT1}")
        E(f"s_and_b32 s{sT1}, s{sKG}, 1")
        E(f"s_lshl_b32 s{sT1}, s{sT1}, 3")
        E(f"s_add_u32 s{sT0}, s{sT0}, s{sT1}")
        E(f"s_lshl_b32 s{sT1}, s{sCB}, 6")
        E(f"s_lshr_b32 s{sT2}, s{sKG}, 1")
        E(f"s_lshl_b32 s{sT2}, s{sT2}, 5")
        E(f"s_add_u32 s{sT1}, s{sT1}, s{sT2}")
        E(f"v_lshl_add_u32 v{vT[5]}, v{vT[4]}, 4, s{sT0}")
        E(f"v_add_u32 v{vT[6]}, s{sT1}, v{vT[0]}")
        E(f"v_lshl_add_u32 v{vT[7]}, v{vT[5]}, 9, v{vT[6]}")
        E(f"v_lshlrev_b32 v{vOUT}, 2, v{vT[7]}")
        E(f"v_lshlrev_b32 v{vT[7]}, 1, v{vT[7]}")
        toks = []
        for e in range(4):
            toks.append(k.vm(f"buffer_load_ushort v{XV+e}, v{vT[7]}, s[{sX}:{sX+3}], 0 offen offset:{e*1024}"))
        E(f"s_movk_i32 s{sT2}, 0x1000")
        for e in range(4, 8):
            toks.append(k.vm(f"buffer_load_ushort v{XV+e}, v{vT[7]}, s[{sX}:{sX+3}], s{sT2} offen offset:{(e-4)*1024}"))
        E(f"v_lshlrev_b32 v{vT[6]}, 1, v{vT[6]}")
        toks.append(k.vm(f"buffer_load_ushort v{vDS}, v{vT[6]}, s[{sD}:{sD+3}], 0 offen"))
        E(f"v_lshlrev_b32 v{vT[5]}, 3, v{vT[5]}")
        return toks

    def run_path(is_g3):
        nst = 11 if is_g3 else 8
        tag = "G3" if is_g3 else "G4"
        if is_g3:
            E(f"s_mov_b32 s{sB}, s52"); E(f"s_mov_b32 s{sB+1}, s53"); E(f"s_mov_b32 s{sB+2}, {1376*1024}")
            E(f"v_bfe_u32 v{vT[5]}, v{vT[2]}, 1, 1")
            E(f"v_lshlrev_b32 v{vT[5]}, 2, v{vT[5]}")
            E(f"v_xor_b32 v{vT[5]}, v{vT[5]}, v{vT[3]}")
            E(f"v_lshlrev_b32 v{vT[5]}, 4, v{vT[5]}")
            E(f"v_lshl_add_u32 v{vDMA0}, v{vT[2]}, 10, v{vT[5]}")
            E(f"s_mul_i32 s{sBB}, s{sKG}, {16*43*1024}")
            E(f"s_lshl_b32 s{sT0}, s{sLT}, 15")
            E(f"s_add_u32 s{sBB}, s{sBB}, s{sT0}")
            E(f"s_lshl_b32 s{sT0}, s{sCB}, 7")
            E(f"s_add_u32 s{sBB}, s{sBB}, s{sT0}")
            E(f"s_mul_i32 s{sAB}, s{sT1}, 86")
            E(f"s_mul_i32 s{sT0}, s{sKG}, 43")
            E(f"s_add_u32 s{sAB}, s{sAB}, s{sT0}")
            E(f"s_lshl_b32 s{sAB}, s{sAB}, 10")
            if HH_OFF: E(f"s_add_u32 s{sAB}, s{sAB}, {HH_OFF}")
            E(f"v_bfe_u32 v{vT[5]}, v{vT[1]}, 2, 2")
            E(f"v_lshl_add_u32 v{vT[5]}, v{vT[4]}, 2, v{vT[5]}")
            E(f"v_lshlrev_b32 v{vT[5]}, 7, v{vT[5]}")
            E(f"v_bfe_u32 v{vT[6]}, v{vT[1]}, 3, 1")
            E(f"v_lshl_add_u32 v{vT[5]}, v{vT[6]}, 6, v{vT[5]}")
            E(f"v_bfe_u32 v{vT[6]}, v{vT[1]}, 4, 1")
            E(f"v_lshl_add_u32 v{vT[5]}, v{vT[6]}, 5, v{vT[5]}")
            E(f"v_and_b32 v{vT[6]}, 3, v{vT[1]}")
            E(f"v_lshl_add_u32 v{vT[5]}, v{vT[6]}, 3, v{vT[5]}")
            E(f"s_lshl_b32 s{sT0}, s{sKG}, 15")
            E(f"v_add_u32 v{vRD[0]}, s{sT0}, v{vT[5]}")
            E(f"v_xor_b32 v{vRD[1]}, 64, v{vRD[0]}")
        else:
            E(f"s_cmp_eq_u32 s{sKG}, 2")
            E(f"s_cselect_b32 s{sB}, s48, s50"); E(f"s_cselect_b32 s{sB+1}, s49, s51"); E(f"s_mov_b32 s{sB+2}, {512*1024}")
            E(f"v_lshrrev_b32 v{vT[5]}, 1, v{vT[2]}")
            E(f"v_xor_b32 v{vT[5]}, v{vT[5]}, v{vT[3]}")
            E(f"v_lshlrev_b32 v{vT[5]}, 4, v{vT[5]}")
            E(f"v_lshl_add_u32 v{vDMA0}, v{vT[2]}, 10, v{vT[5]}")
            E(f"v_xor_b32 v{vDMA1}, 64, v{vDMA0}")
            E(f"s_lshl_b32 s{sBB}, s{sCB}, 16")
            E(f"s_lshl_b32 s{sT0}, s{sLT}, 15")
            E(f"s_add_u32 s{sBB}, s{sBB}, s{sT0}")
            E(f"s_lshl_b32 s{sAB}, s{sT1}, 1")
            E(f"s_add_u32 s{sAB}, s{sAB}, s{sKG}")
            E(f"s_sub_u32 s{sAB}, s{sAB}, 2")
            E(f"s_lshl_b32 s{sAB}, s{sAB}, 15")
            E(f"s_add_u32 s{sAB}, s{sAB}, {HS_OFF}")
            E(f"v_and_b32 v{vT[5]}, 31, v{vT[1]}")
            E(f"v_bfe_u32 v{vT[6]}, v{vT[1]}, 1, 3")
            E(f"v_xor_b32 v{vT[6]}, v{vT[6]}, v{vT[4]}")
            E(f"v_lshlrev_b32 v{vT[6]}, 4, v{vT[6]}")
            E(f"v_lshl_add_u32 v{vT[5]}, v{vT[5]}, 7, v{vT[6]}")
            E(f"s_lshl_b32 s{sT0}, s{sKG}, 15")
            E(f"v_add_u32 v{vRD[0]}, s{sT0}, v{vT[5]}")
            for j in range(1, 4): E(f"v_xor_b32 v{vRD[j]}, {j<<5}, v{vRD[0]}")

        last_tok = {}
        def issue(t):
            slot = t % 4
            stage_index(t, nst)
            if is_g3:
                E(f"s_lshl_b32 s{sT0}, s{sT2}, 16")
            else:
                E(f"s_lshl_b32 s{sT0}, s{sT2}, 7")
            E(f"s_add_u32 s{sT0}, s{sT0}, s{sBB}")
            E(f"s_lshl_b32 s{sT1}, s{sT2}, 12")
            E(f"s_add_u32 s{sT1}, s{sT1}, s{sAB}")
            if is_g3:
                E(f"s_cmp_eq_u32 s{sT2}, 10")
                E(f"s_cselect_b32 s{sT3}, {OOB}, s{sT1}")
            for i in range(4):
                E(f"s_add_u32 m0, s{sM0B}, {slot*8192 + i*1024}")
                va = vDMA0 if (is_g3 or i % 2 == 0) else vDMA1
                k.vm(f"buffer_load_dwordx4 v{va}, s[{sB}:{sB+3}], s{sT0} offen lds")
                if i < 3: E(f"s_add_u32 s{sT0}, s{sT0}, 8192")
                so = sT3 if (is_g3 and i == 3) else sT1
                r = AR + slot*16 + i*4
                tok = k.vm(f"buffer_load_dwordx4 v[{r}:{r+3}], v{vLANE16}, s[{sA}:{sA+3}], s{so} offen offset:{i*1024}")
            last_tok[t] = tok

        for t in range(min(4, nst)): issue(t)
        zero_acc()
        ep_toks = None
        for t in range(11):
            if t < nst:
                k.wait(vm=last_tok[t])
            k.wait_all_ds()
            E("s_barrier")
            if t >= 1 and t + 3 < nst: issue(t + 3)
            if t == (8 if is_g3 else 8): ep_toks = epilogue_loads()
            if t < nst:
                slot = t % 4
                toks = []
                for j in range(4):
                    for ct in range(2):
                        b = BF + j*8 + ct*4
                        if is_g3:
                            for a in range(2):
                                tk = k.ds(f"ds_read_b64_tr_b16 v[{b+2*a}:{b+2*a+1}], v{vRD[ct]} offset:{slot*8192 + (16*j+8*a)*128}")
                        else:
                            tk = k.ds(f"ds_read_b128 v[{b}:{b+3}], v{vRD[j]} offset:{slot*8192 + ct*4096}")
                        toks.append(tk)
                for j in range(4):
                    a = AR + slot*16 + j*4
                    for ct in range(2):
                        b = BF + j*8 + ct*4
                        k.wait(ds=toks[j*2+ct])
                        E(f"v_mfma_f32_32x32x16_bf16 v[{ACC+16*ct}:{ACC+16*ct+15}], v[{a}:{a+3}], v[{b}:{b+3}], v[{ACC+16*ct}:{ACC+16*ct+15}]")
        return ep_toks

    ep = run_path(True)
    E("s_branch K2_RED")
    stA = k.state()
    k.restore(st0)
    E("K2_G4:")
    ep = run_path(False)
    E("K2_RED:")
    E("RESET_K2:")
    SV = AR
    for i in range(4):
        E(f"buffer_load_dwordx4 v[{SV+4*i}:{SV+4*i+3}], v{vT[5]}, s[{sA}:{sA+3}], s{sT3} offen offset:{16*i}" if False else "")
    E(f"s_mov_b32 s{sT3}, {ST_OFF}")
    for i in range(4):
        E(f"buffer_load_dwordx4 v[{SV+4*i}:{SV+4*i+3}], v{vT[5]}, s[{sA}:{sA+3}], s{sT3} offen offset:{16*i}")
    E(f"s_lshl_b32 s{sT0}, s{sLT}, 15")
    E(f"s_lshl_b32 s{sT1}, s{sKG}, 11")
    E(f"s_add_u32 s{sT1}, s{sT1}, s{sT0}")
    E(f"v_add_u32 v{vRED_W}, s{sT1}, v{vLANE16}")
    E(f"s_lshl_b32 s{sT1}, s{sKG}, 13")
    E(f"s_add_u32 s{sT1}, s{sT1}, s{sT0}")
    E(f"v_add_u32 v{vRED_R}, s{sT1}, v{vLANE16}")
    E("s_waitcnt lgkmcnt(0)")
    E("s_barrier")
    for q in range(4):
        for hf in range(2):
            r = ACC + q*8 + hf*4
            E(f"ds_write_b128 v{vRED_W}, v[{r}:{r+3}] offset:{q*8192 + hf*1024}")
    E("s_waitcnt lgkmcnt(0)")
    E("s_barrier")
    P = BF
    for src in range(4):
        for hf in range(2):
            r = P + src*8 + hf*4
            E(f"ds_read_b128 v[{r}:{r+3}], v{vRED_R} offset:{src*2048 + hf*1024}")
    E("s_waitcnt vmcnt(0)")
    TT = ACC
    E(f"v_lshlrev_b32 v{vDS}, 16, v{vDS}")
    E(f"s_mov_b32 s{sT0}, 0xffff0000")
    for e in range(8):
        E(f"v_lshlrev_b32 v{XV+e}, 16, v{XV+e}")
    for e in range(8):
        E(f"v_sub_f32 v{TT+e}, v{XV+e}, v{SV+2*e}")
    def round_pairs(base):
        for e in range(0, 8, 2):
            E(f"v_cvt_pk_bf16_f32 v{vT[e//2]}, v{base+e}, v{base+e+1}")
        for e in range(0, 8, 2):
            E(f"v_lshlrev_b32 v{base+e}, 16, v{vT[e//2]}")
            E(f"v_and_b32 v{base+e+1}, s{sT0}, v{vT[e//2]}")
    round_pairs(TT)
    for e in range(8): E(f"v_mul_f32 v{TT+e}, v{TT+e}, v{SV+2*e+1}")
    round_pairs(TT)
    for e in range(8): E(f"v_mul_f32 v{TT+e}, v{TT+e}, v{vDS}")
    round_pairs(TT)
    E("s_waitcnt lgkmcnt(0)")
    M = ACC + 8; G = ACC + 16
    for e in range(8): E(f"v_add_f32 v{M+e}, v{P+e}, v{P+8+e}")
    round_pairs(M)
    E(f"s_mov_b32 s{sT1}, 0xbfb8aa3b")
    for e in range(8): E(f"v_mul_f32 v{G+e}, s{sT1}, v{M+e}")
    for e in range(8): E(f"v_exp_f32 v{G+e}, v{G+e}")
    for e in range(8): E(f"v_add_f32 v{P+16+e}, v{P+16+e}, v{P+24+e}")
    for e in range(8): E(f"v_add_f32 v{G+e}, 1.0, v{G+e}")
    for e in range(8): E(f"v_rcp_f32 v{G+e}, v{G+e}")
    for e in range(8): E(f"v_add_f32 v{TT+e}, v{TT+e}, v{P+16+e}")
    for e in range(8): E(f"v_mul_f32 v{G+e}, v{G+e}, v{M+e}")
    round_pairs(G)
    for e in range(8): E(f"v_fma_f32 v{XV+e}, v{TT+e}, v{G+e}, v{XV+e}")
    for e in range(8):
        if e % 2 == 0 and e > 0: E(f"v_add_u32 v{vOUT}, 0x1000, v{vOUT}")
        E(f"buffer_store_dword v{XV+e}, v{vOUT}, s[{sO}:{sO+3}], 0 offen offset:{(e%2)*2048}")
    E("K2_END:")
    E("s_endpgm")
    k.finish()
    return k

if __name__ == "__main__":
    k2 = gen_k2()
    write_file("k2_only.s", ["; @launch kernel=ssm_k2_kernel grid=(256,1,1) block=(512,1,1) lds=131072"], [k2])
```

```python
from asmgen import *
from layout import *

LX = 0
LB = 65536
LW = 98304
LM = 147456
L_STAT = LM
L_CSB  = LM + 4096
L_RST  = LM + 6144
L_SEG  = LM + 6656
L_PAR  = LM + 8704
L_ASEG = LM + 9728
LDS_K1 = LM + 11776
L_CSW  = LB
L_HT   = LB + 8192

def gen_k1(name="ssm_k1_kernel", rotate=True, stamps=False):
    k = Kern(name, vgpr=128, agpr=128, sgpr=96)
    E = k
    ACC = 64
    FB = 32
    vXR = [1, 2, 3, 4]
    vBR = [5, 6, 7, 8]
    vWR = [9, 10]
    vXD = [11, 12]
    vBD = [13, 14]
    vWD = [15, 16, 17]
    vS, vQ = 18, 19
    vS2, vQ2 = 20, 21
    vCS = [22, 23, 24, 25]
    vL = 26
    vT = [27, 28, 29, 30, 31]
    sX, sBm, sWm, sWS, sDBG, sP0, sP1, sP2 = 8, 12, 16, 20, 24, 28, 32, 36
    sW, sRG, sRB, sCS, sROT, sFT0, sTAG, sONE = 40, 41, 42, 43, 44, 45, 46, 47
    sXB, sBB, sWB, sT3OFF = 48, 49, 50, 51
    sT0, sT1, sT2, sT3 = 52, 53, 54, 55
    sMX, sMB, sMW = 56, 57, 58
    sMASK = 59
    PT = 64
    E("s_cmp_ge_u32 s2, 256")
    E("s_cbranch_scc1 K1_END")
    if stamps: E("s_memrealtime s[92:93]")
    E("s_load_dwordx8 s[64:71], s[0:1], 0")
    E("s_load_dwordx2 s[72:73], s[0:1], 32")
    E("s_load_dwordx2 s[74:75], s[0:1], 56")
    E("s_load_dwordx4 s[76:79], s[0:1], 80")
    E("s_load_dwordx4 s[80:83], s[0:1], 112")
    E(f"v_lshrrev_b32 v{vT[0]}, 6, v0")
    E(f"v_and_b32 v{vL}, 63, v0")
    E(f"v_readfirstlane_b32 s{sW}, v{vT[0]}")
    E(f"s_and_b32 s{sT0}, s2, 7")
    E(f"s_lshr_b32 s{sT1}, s2, 3")
    E(f"s_and_b32 s{sRG}, s{sW}, 3")
    E(f"s_lshr_b32 s{sRB}, s{sT0}, 2"); E(f"s_lshl_b32 s{sRB}, s{sRB}, 3")
    E(f"s_and_b32 s{sT2}, s{sT1}, 7"); E(f"s_add_u32 s{sRB}, s{sRB}, s{sT2}")
    E(f"s_and_b32 s{sCS}, s{sT0}, 3"); E(f"s_lshl_b32 s{sCS}, s{sCS}, 2")
    E(f"s_lshr_b32 s{sT2}, s{sT1}, 3"); E(f"s_add_u32 s{sCS}, s{sCS}, s{sT2}")
    E(f"s_lshl_b32 s{sROT}, s{sCS}, 1"); E(f"s_add_u32 s{sROT}, s{sROT}, s{sRB}"); E(f"s_and_b32 s{sROT}, s{sROT}, 7")
    if not rotate: E(f"s_mov_b32 s{sROT}, 0")
    E(f"s_mul_i32 s{sT2}, s{sCS}, 3")
    E(f"s_lshl_b32 s{sT3}, s{sCS}, 1"); E(f"s_add_u32 s{sT3}, s{sT3}, 11")
    E(f"s_cmp_lt_u32 s{sCS}, 11")
    E(f"s_cselect_b32 s{sFT0}, s{sT2}, s{sT3}")
    E(f"s_cselect_b32 s{sT3OFF}, 0, {OOB}")
    E(f"s_mov_b32 s{sONE}, 0x3f803f80")
    E(f"s_mov_b32 s{sMASK}, 0xffff0000")
    r_, pos_, g_, a_, b_ = vT
    E(f"v_lshrrev_b32 v{r_}, 3, v{vL}")
    E(f"v_and_b32 v{pos_}, 7, v{vL}")
    E(f"v_lshrrev_b32 v{a_}, 1, v{r_}")
    E(f"v_xor_b32 v{a_}, v{a_}, v{pos_}")
    E(f"v_lshlrev_b32 v{a_}, 4, v{a_}")
    E(f"v_lshl_add_u32 v{vBD[0]}, v{r_}, 10, v{a_}")
    E(f"v_xor_b32 v{vBD[1]}, 64, v{vBD[0]}")
    E(f"v_lshrrev_b32 v{b_}, 2, v{r_}")
    E(f"v_lshlrev_b32 v{b_}, 4, v{b_}")
    E(f"v_and_or_b32 v{b_}, v{r_}, 3, v{b_}")
    E(f"v_lshl_add_u32 v{vXD[0]}, v{b_}, 10, v{a_}")
    E(f"v_xor_b32 v{vXD[1]}, 64, v{vXD[0]}")
    for ph in range(3):
        E(f"v_add_u32 v{a_}, {64*ph}, v{vL}")
        E(f"v_mul_u32_u24 v{b_}, 0x556, v{a_}")
        E(f"v_lshrrev_b32 v{b_}, 14, v{b_}")
        E(f"v_mul_u32_u24 v{g_}, 12, v{b_}")
        E(f"v_sub_u32 v{a_}, v{a_}, v{g_}")
        E(f"v_mul_u32_u24 v{b_}, 0xac0, v{b_}")
        E(f"v_lshl_add_u32 v{vWD[ph]}, v{a_}, 4, v{b_}")
        E(f"v_cmp_lt_u32 vcc, 7, v{a_}")
        E(f"v_mov_b32 v{g_}, s{sT3OFF}")
        E(f"v_cndmask_b32 v{g_}, 0, v{g_}, vcc")
        E(f"v_add_u32 v{vWD[ph]}, v{vWD[ph]}, v{g_}")
    E(f"v_lshrrev_b32 v{g_}, 5, v{vL}")
    E(f"v_and_b32 v{a_}, 31, v{vL}")
    E(f"v_bfe_u32 v{b_}, v{vL}, 1, 3")
    E(f"v_xor_b32 v{b_}, v{b_}, v{g_}")
    E(f"v_lshlrev_b32 v{b_}, 4, v{b_}")
    E(f"v_lshl_add_u32 v{a_}, v{a_}, 7, v{b_}")
    E(f"s_lshl_b32 s{sT2}, s{sRG}, 12")
    E(f"v_add_u32 v{vXR[0]}, s{sT2}, v{a_}")
    E(f"v_add_u32 v{vBR[0]}, {LB}, v{a_}")
    for j in range(1, 4):
        E(f"v_xor_b32 v{vXR[j]}, {j<<5}, v{vXR[0]}")
        E(f"v_xor_b32 v{vBR[j]}, {j<<5}, v{vBR[0]}")
    E(f"v_bfe_u32 v{a_}, v{vL}, 2, 2")
    E(f"v_lshl_add_u32 v{a_}, v{g_}, 3, v{a_}")
    E(f"v_mul_u32_u24 v{a_}, 192, v{a_}")
    E(f"v_bfe_u32 v{b_}, v{vL}, 4, 1")
    E(f"v_lshl_add_u32 v{a_}, v{b_}, 5, v{a_}")
    E(f"v_and_b32 v{b_}, 3, v{vL}")
    E(f"v_lshl_add_u32 v{vWR[1]}, v{b_}, 3, v{a_}")
    E(f"v_add_u32 v{vWR[0]}, {LW}, v{vWR[1]}")
    for v in (vS, vQ, vS2, vQ2, *vCS): E(f"v_mov_b32 v{v}, 0")
    E(f"s_lshl_b32 s{sXB}, s{sRB}, 17"); E(f"s_lshl_b32 s{sT2}, s{sRG}, 15"); E(f"s_add_u32 s{sXB}, s{sXB}, s{sT2}")
    E(f"s_lshl_b32 s{sBB}, s{sCS}, 15"); E(f"s_and_b32 s{sT3}, s{sRG}, 1"); E(f"s_lshl_b32 s{sT2}, s{sT3}, 14"); E(f"s_add_u32 s{sBB}, s{sBB}, s{sT2}")
    E(f"s_mul_i32 s{sWB}, s{sT3}, {16*2752}"); E(f"s_lshl_b32 s{sT2}, s{sFT0}, 6"); E(f"s_add_u32 s{sWB}, s{sWB}, s{sT2}")
    E(f"s_lshl_b32 s{sMX}, s{sRG}, 12")
    E(f"s_lshl_b32 s{sMB}, s{sRG}, 11"); E(f"s_add_u32 s{sMB}, s{sMB}, {LB}")
    E(f"s_mul_i32 s{sMW}, s{sRG}, 3072")
    E("s_waitcnt lgkmcnt(0)")
    def srd(s, lo, n):
        E(f"s_mov_b32 s{s}, s{lo}"); E(f"s_mov_b32 s{s+1}, s{lo+1}"); E(f"s_mov_b32 s{s+2}, {n}"); E(f"s_mov_b32 s{s+3}, 0x00020000")
    srd(sX, 64, 2097152)
    E(f"s_cmp_lt_u32 s{sRG}, 2")
    E(f"s_cselect_b32 s{sBm}, s70, s72"); E(f"s_cselect_b32 s{sBm+1}, s71, s73"); E(f"s_mov_b32 s{sBm+2}, {512*1024}"); E(f"s_mov_b32 s{sBm+3}, 0x00020000")
    E(f"s_cselect_b32 s{sWm}, s76, s78"); E(f"s_cselect_b32 s{sWm+1}, s77, s79"); E(f"s_mov_b32 s{sWm+2}, {512*2752}"); E(f"s_mov_b32 s{sWm+3}, 0x00020000")
    srd(sWS, 82, WS_SIZE); srd(sDBG, 80, 256)
    srd(sP0, 66, 1024); srd(sP1, 68, 1024); srd(sP2, 74, 1024)
    E(f"s_add_u32 s84, s82, {EP_OFF}"); E("s_addc_u32 s85, s83, 0")
    E(f"s_load_dword s{sTAG}, s[84:85], 0")
    E(f"s_cmp_ge_u32 s{sW}, 4")
    E("s_cbranch_scc1 K1_Z")
    st0 = k.state()

    cnt = [0]
    def lab(p):
        cnt[0] += 1; return f"K1_{p}{cnt[0]}"

    def round1(v, tmp=None):
        E(f"v_cvt_pk_bf16_f32 v{v}, v{v}, v{v}")
        E(f"v_and_b32 v{v}, s{sMASK}, v{v}")

    def path(isY):
        tl = "Y" if isY else "Z"
        step_last = {}
        def issue(t):
            slot = t % 4
            tok = None
            if t < 8:
                E(f"s_add_u32 s{sT0}, s{sROT}, {t}"); E(f"s_and_b32 s{sT0}, s{sT0}, 7")
                E(f"s_lshl_b32 s{sT1}, s{sT0}, 7")
                E(f"s_add_u32 s{sT2}, s{sT1}, s{sXB}")
                for qq in range(2):
                    q = qq + (0 if isY else 2)
                    E(f"s_add_u32 m0, s{sMX}, {LX + slot*16384 + q*1024}")
                    E(f"s_add_u32 s{sT3}, s{sT2}, {q*4096}")
                    tok = k.vm(f"buffer_load_dwordx4 v{vXD[q&1]}, s[{sX}:{sX+3}], s{sT3} offen lds")
                if isY:
                    E(f"s_add_u32 s{sT2}, s{sT1}, s{sBB}")
                    for qq in range(2):
                        E(f"s_add_u32 m0, s{sMB}, {slot*8192 + qq*1024}")
                        E(f"s_add_u32 s{sT3}, s{sT2}, {qq*8192}")
                        tok = k.vm(f"buffer_load_dwordx4 v{vBD[qq]}, s[{sBm}:{sBm+3}], s{sT3} offen lds")
            u = None
            if t < 8:
                if not isY: u = t; dest = LW + slot*12288
            else:
                u = 8 + 2*(t-8) + (1 if isY else 0)
                dest = (LX + slot*16384) if isY else (LW + slot*12288)
            if u is not None:
                E(f"s_lshl_b32 s{sT0}, s{sROT}, 1"); E(f"s_add_u32 s{sT0}, s{sT0}, {u}"); E(f"s_and_b32 s{sT0}, s{sT0}, 15")
                E(f"s_mul_i32 s{sT0}, s{sT0}, {32*2752}"); E(f"s_add_u32 s{sT0}, s{sT0}, s{sWB}")
                for ph in range(3):
                    E(f"s_add_u32 m0, s{sMW}, {dest + ph*1024}")
                    tok = k.vm(f"buffer_load_dwordx4 v{vWD[ph]}, s[{sWm}:{sWm+3}], s{sT0} offen lds")
            step_last[t] = tok

        if isY:
            E(f"v_and_b32 v{vT[0]}, 31, v{vL}")
            E(f"s_lshl_b32 s{sT0}, s{sCS}, 6")
            E(f"v_lshl_add_u32 v{vT[0]}, v{vT[0]}, 1, s{sT0}")
            PV = FB
            k.vm(f"buffer_load_ushort v{PV}, v{vT[0]}, s[{sP0}:{sP0+3}], 0 offen")
            k.vm(f"buffer_load_ushort v{PV+1}, v{vT[0]}, s[{sP1}:{sP1+3}], 0 offen")
            ptok = k.vm(f"buffer_load_ushort v{PV+2}, v{vT[0]}, s[{sP2}:{sP2+3}], 0 offen")
        for t in range(4): issue(t)
        for i in range(64): E(f"v_mov_b32 v{ACC+i}, 0")
        E("s_waitcnt lgkmcnt(0)")
        E(f"s_mul_i32 s{sTAG}, s{sTAG}, 0x9E3779B1"); E(f"s_add_u32 s{sTAG}, s{sTAG}, 0x7F4A7C15")
        if isY:
            k.wait(vm=ptok)
            lre, lim, ldt, zr, zi, nn, mg, ph, den = [PV+i for i in range(9)]
            O = PV + 12
            for v in (lre, lim, ldt): E(f"v_lshlrev_b32 v{v}, 16, v{v}")
            E(f"v_mul_f32 v{ldt}, 0x3fb8aa3b, v{ldt}")
            E(f"v_exp_f32 v{ldt}, v{ldt}")
            round1(ldt)
            E(f"v_mul_f32 v{zr}, v{ldt}, v{lre}")
            E(f"v_mul_f32 v{zi}, v{ldt}, v{lim}")
            E(f"v_mul_f32 v{zr}, 0x3fb8aa3b, v{zr}")
            E(f"v_mul_f32 v{zi}, 0.15915494309189535, v{zi}")
            E(f"v_lshrrev_b32 v{nn}, 5, v{vL}")
            E(f"s_lshl_b32 s{sT0}, s{sRG}, 1")
            E(f"v_add_u32 v{nn}, s{sT0}, v{nn}")
            E(f"v_lshlrev_b32 v{vT[1]}, 8, v{nn}")
            E(f"v_lshlrev_b32 v{nn}, 4, v{nn}")
            E(f"v_cvt_f32_u32 v{nn}, v{nn}")
            for (n, o) in (("1.0", O), ("0x41800000", O+2), ("0x43000000", O+4), (f"v{nn}", O+8)):
                E(f"v_mul_f32 v{mg}, {n}, v{zr}")
                E(f"v_mul_f32 v{ph}, {n}, v{zi}")
                E(f"v_exp_f32 v{mg}, v{mg}")
                E(f"v_fract_f32 v{ph}, v{ph}")
                E(f"v_cos_f32 v{o}, v{ph}")
                E(f"v_sin_f32 v{o+1}, v{ph}")
                E(f"v_mul_f32 v{o}, v{o}, v{mg}")
                E(f"v_mul_f32 v{o+1}, v{o+1}, v{mg}")
            E(f"v_mul_f32 v{den}, v{lre}, v{lre}")
            E(f"v_fmac_f32 v{den}, v{lim}, v{lim}")
            E(f"v_rcp_f32 v{den}, v{den}")
            E(f"v_add_f32 v{mg}, -1.0, v{O}")
            E(f"v_mul_f32 v{O+6}, v{mg}, v{lre}")
            E(f"v_fmac_f32 v{O+6}, v{O+1}, v{lim}")
            E(f"v_mul_f32 v{O+7}, v{O+1}, v{lre}")
            E(f"v_fma_f32 v{O+7}, -v{mg}, v{lim}, v{O+7}")
            E(f"v_add_f32 v{den}, v{den}, v{den}")
            E(f"v_mul_f32 v{O+6}, v{O+6}, v{den}")
            E(f"v_mul_f32 v{O+7}, v{O+7}, v{den}")
            E(f"v_and_b32 v{vT[0]}, 31, v{vL}")
            E(f"v_lshlrev_b32 v{vT[2]}, 5, v{vT[0]}")
            E(f"v_add_u32 v{vT[2]}, {L_PAR}, v{vT[2]}")
            k.ds(f"ds_write_b128 v{vT[2]}, v[{O}:{O+3}]")
            k.ds(f"ds_write_b128 v{vT[2]}, v[{O+4}:{O+7}] offset:16")
            E(f"v_lshl_add_u32 v{vT[1]}, v{vT[0]}, 3, v{vT[1]}")
            E(f"v_add_u32 v{vT[1]}, {L_ASEG}, v{vT[1]}")
            k.ds(f"ds_write_b64 v{vT[1]}, v[{O+8}:{O+9}]")

        items = []
        def xq(slot_t, j): return (slot_t*4 + j)*4
        def add_items(t):
            slot = t % 4
            its = []
            if t < 8:
                for j in range(4):
                    its.append(dict(t=t, nb=0, rd=lambda b, j=j: [f"ds_read_b128 a[{xq(t,j)}:{xq(t,j)+3}], v{vXR[j]} offset:{slot*16384}"], comp=None, xread=(t, j)))
                if isY:
                    for j in range(4):
                        def rd(b, j=j): return [f"ds_read_b128 v[{b[c]}:{b[c]+3}], v{vBR[j]} offset:{slot*8192 + c*4096}" for c in range(2)]
                        def comp(b, j=j):
                            for c in range(2):
                                E(f"v_mfma_f32_32x32x16_bf16 v[{ACC+16*c}:{ACC+16*c+15}], a[{xq(t,j)}:{xq(t,j)+3}], v[{b[c]}:{b[c]+3}], v[{ACC+16*c}:{ACC+16*c+15}]")
                            l = lab("cs")
                            E(f"s_cmp_eq_u32 s{sRG}, {j}"); E(f"s_cbranch_scc0 {l}")
                            for d in range(4):
                                for c in range(2): E(f"v_dot2c_f32_bf16 v{vCS[c]}, s{sONE}, v{b[c]+d}")
                            E(f"{l}:")
                        its.append(dict(t=t, nb=2, rd=rd, comp=comp, need_x=(t, j)))
                for jj in range(2):
                    j = jj + (0 if isY else 2)
                    def rd(b, j=j): return [f"ds_read_b128 v[{b[0]}:{b[0]+3}], v{vXR[j]} offset:{slot*16384}"]
                    def comp(b):
                        for d in range(4):
                            E(f"v_dot2c_f32_bf16 v{vS if d%2==0 else vS2}, s{sONE}, v{b[0]+d}")
                            E(f"v_dot2c_f32_bf16 v{vQ if d%2==0 else vQ2}, v{b[0]+d}, v{b[0]+d}")
                    its.append(dict(t=t, nb=1, rd=rd, comp=comp))
            us = [(t, 0, slot*12288)] if t < 8 else [(8+2*(t-8), 0, slot*12288), (9+2*(t-8), 1, slot*16384)]
            tiles = [(0, 2)] if isY else [(1, 0), (2, 2)]
            for (u, reg, base) in us:
                for ks in range(2):
                    xs, xj = u >> 1, 2*(u & 1) + ks
                    for (j3, at) in tiles:
                        def rd(b, ks=ks, j3=j3, reg=reg, base=base):
                            out = []
                            for mt in range(2):
                                for a in range(2):
                                    out.append(f"ds_read_b64_tr_b16 v[{b[mt]+2*a}:{b[mt]+2*a+1}], v{vWR[reg]} offset:{base + mt*6144 + (16*ks+4*a)*192 + 64*j3}")
                            return out
                        def comp(b, ks=ks, at=at, xs=xs, xj=xj, u=u):
                            for mt in range(2):
                                d = ACC + 16*(at+mt)
                                E(f"v_mfma_f32_32x32x16_bf16 v[{d}:{d+15}], v[{b[mt]}:{b[mt]+3}], a[{xq(xs,xj)}:{xq(xs,xj)+3}], v[{d}:{d+15}]")
                            l = lab("cs")
                            E(f"s_cmp_eq_u32 s{sRG}, {(2*u+ks)%4}"); E(f"s_cbranch_scc0 {l}")
                            for d in range(4):
                                for mt in range(2): E(f"v_dot2c_f32_bf16 v{vCS[at+mt]}, s{sONE}, v{b[mt]+d}")
                            E(f"{l}:")
                        its.append(dict(t=t, nb=2, rd=rd, comp=comp, need_x=(xs, xj)))
            return its

        free = [FB + 4*i for i in range(8)]
        xtok = {}
        def run_step(t, pre=None, post=None):
            its = add_items(t)
            nxt = 0
            def issue_reads():
                nonlocal nxt
                while nxt < len(its) and its[nxt]['nb'] <= len(free):
                    it = its[nxt]
                    it['b'] = [free.pop(0) for _ in range(it['nb'])]
                    for s in it['rd'](it['b']): it['tok'] = k.ds(s)
                    if 'xread' in it: xtok[it['xread']] = it['tok']
                    nxt += 1
            issue_reads()
            if pre: pre()
            for it in its:
                if it['comp'] is None: continue
                tk = it['tok']
                if 'need_x' in it: tk = max(tk, xtok[it['need_x']])
                k.wait(ds=tk)
                it['comp'](it['b'])
                free.extend(it['b'])
                issue_reads()

        def barrier(t):
            if t in step_last: k.wait(vm=step_last[t])
            k.wait_all_ds()
            E("s_barrier")

        def finalize_stats(R):
            E(f"v_and_b32 v{vT[0]}, 31, v{vL}")
            E(f"s_lshl_b32 s{sT0}, s{sRG}, 10")
            E(f"v_lshl_add_u32 v{vT[0]}, v{vT[0]}, 5, s{sT0}")
            E(f"v_add_u32 v{vT[0]}, {L_STAT}, v{vT[0]}")
            k.ds(f"ds_read_b128 v[{R}:{R+3}], v{vT[0]}")
            tk = k.ds(f"ds_read_b128 v[{R+4}:{R+7}], v{vT[0]} offset:16")
            k.wait(ds=tk)
            m, rs, t1, t2 = R+8, R+9, R+10, R+11
            E(f"v_add_f32 v{R}, v{R}, v{R+2}"); E(f"v_add_f32 v{R+1}, v{R+1}, v{R+3}")
            E(f"v_add_f32 v{R+4}, v{R+4}, v{R+6}"); E(f"v_add_f32 v{R+5}, v{R+5}, v{R+7}")
            E(f"v_add_f32 v{R}, v{R}, v{R+4}"); E(f"v_add_f32 v{R+1}, v{R+1}, v{R+5}")
            E(f"v_mul_f32 v{m}, 0x3b000000, v{R}")
            E(f"v_mul_f32 v{t1}, 0x3b000000, v{R+1}")
            E(f"v_fma_f32 v{t1}, -v{m}, v{m}, v{t1}")
            E(f"v_max_f32 v{t1}, 0, v{t1}")
            round1(m); round1(t1)
            E(f"v_add_f32 v{t1}, 0x3727c5ac, v{t1}")
            round1(t1)
            E(f"v_sqrt_f32 v{t1}, v{t1}")
            round1(t1)
            E(f"v_rcp_f32 v{rs}, v{t1}")
            E(f"v_fma_f32 v{t2}, -v{t1}, v{rs}, 1.0")
            E(f"v_fmac_f32 v{rs}, v{t2}, v{rs}")
            return m, rs

        def mfrag(dst, m):
            E(f"v_xor_b32 v{dst+1}, 0x80000000, v{m}")
            E(f"v_lshrrev_b32 v{dst+1}, 16, v{dst+1}")
            E(f"v_lshl_or_b32 v{dst}, v{dst+1}, 16, v{dst+1}")
            E(f"v_mov_b32 v{dst+2}, 0"); E(f"v_mov_b32 v{dst+3}, 0")
        def csfrag(dst, c, t1):
            E(f"v_and_b32 v{t1}, s{sMASK}, v{c}")
            E(f"v_sub_f32 v{c}, v{c}, v{t1}")
            E(f"v_and_b32 v{dst+1}, s{sMASK}, v{c}")
            E(f"v_lshrrev_b32 v{t1}, 16, v{t1}")
            E(f"v_or_b32 v{dst}, v{dst+1}, v{t1}")
            E(f"v_sub_f32 v{c}, v{c}, v{dst+1}")
            E(f"v_lshrrev_b32 v{dst+1}, 16, v{c}")
            E(f"v_mov_b32 v{dst+2}, 0"); E(f"v_mov_b32 v{dst+3}, 0")

        vM, vRS = vS, vQ
        pA, pA16, pA128, pC2 = 1, 3, 5, 7
        PAR = 2
        for t in range(12):
            barrier(t)
            if t >= 1 and t + 3 < 12: issue(t + 3)
            if t == 1 and not isY:
                E(f"v_mov_b32 v{vT[3]}, {OOB}")
                E(f"s_cmp_eq_u32 s{sRG}, 0")
                E(f"s_cselect_b32 s{sT0}, 0, 64")
                E(f"v_cmp_eq_u32 vcc, s{sT0}, v{vL}")
                E(f"v_mov_b32 v{vT[4]}, 1")
                E(f"v_cndmask_b32 v{vT[3]}, v{vT[3]}, 0, vcc")
                atok = k.vm(f"buffer_atomic_add v{vT[4]}, v{vT[3]}, s[{sDBG}:{sDBG+3}], 0 offen sc0")
            pre = None
            if t == 8:
                def pre8():
                    pass
                free.sort(); q = [free.pop() for _ in range(3)]; q.sort()
                assert q[1] == q[0] + 4 and q[2] == q[0] + 8, q
                R = q[0]
                m, rs = finalize_stats(R)
                E(f"v_mov_b32 v{vM}, v{m}"); E(f"v_mov_b32 v{vRS}, v{rs}")
                if not isY:
                    E(f"v_and_b32 v{vT[0]}, 3, v{vL}")
                    E(f"v_bfe_u32 v{vT[1]}, v{vL}, 3, 2")
                    E(f"v_lshl_add_u32 v{vT[0]}, v{vT[1]}, 2, v{vT[0]}")
                    E(f"v_bfe_u32 v{vT[1]}, v{vL}, 2, 1")
                    E(f"v_lshl_add_u32 v{vT[0]}, v{vT[1]}, 4, v{vT[0]}")
                    E(f"v_lshlrev_b32 v{vT[0]}, 3, v{vT[0]}")
                    E(f"s_lshr_b32 s{sT0}, s{sXB}, 7")
                    E(f"s_add_u32 s{sT0}, s{sT0}, {ST_OFF}")
                    E(f"s_cmp_eq_u32 s{sCS}, 0")
                    E(f"s_cselect_b32 s{sT0}, s{sT0}, {OOB}")
                    k.vm(f"buffer_store_dwordx2 v[{m}:{m+1}], v{vT[0]}, s[{sWS}:{sWS+3}], s{sT0} offen")
                    free.extend(q)
                else:
                    q2 = [free.pop() for _ in range(4)]; q2.sort()
                    assert q2[3] == q2[0] + 12, q2
                    Rr = q2[0]
                    E(f"v_lshlrev_b32 v{vT[0]}, 3, v{vL}")
                    E(f"v_add_u32 v{vT[0]}, {L_CSB}, v{vT[0]}")
                    for w in range(4): tk = k.ds(f"ds_read_b64 v[{Rr+2*w}:{Rr+2*w+1}], v{vT[0]} offset:{w*512}")
                    E(f"v_and_b32 v{vT[1]}, 3, v{vL}")
                    E(f"v_bfe_u32 v{vT[2]}, v{vL}, 3, 2")
                    E(f"v_lshl_add_u32 v{vT[1]}, v{vT[2]}, 2, v{vT[1]}")
                    E(f"v_bfe_u32 v{vT[2]}, v{vL}, 2, 1")
                    E(f"v_lshl_add_u32 v{vT[1]}, v{vT[2]}, 4, v{vT[1]}")
                    E(f"s_lshl_b32 s{sT0}, s{sRG}, 7"); E(f"s_add_u32 s{sT0}, s{sT0}, {L_RST}")
                    E(f"v_lshl_add_u32 v{vT[1]}, v{vT[1]}, 2, s{sT0}")
                    k.ds(f"ds_write_b32 v{vT[1]}, v{vRS}")
                    mfrag(R, vM)
                    k.wait(ds=tk)
                    for c in range(2):
                        E(f"v_add_f32 v{Rr+c}, v{Rr+c}, v{Rr+2+c}"); E(f"v_add_f32 v{Rr+4+c}, v{Rr+4+c}, v{Rr+6+c}")
                    for c in range(2): E(f"v_add_f32 v{Rr+c}, v{Rr+c}, v{Rr+4+c}")
                    csfrag(R+4, Rr, vT[0]); csfrag(R+8, Rr+1, vT[0])
                    for c in range(2):
                        E(f"v_mfma_f32_32x32x16_bf16 v[{ACC+16*c}:{ACC+16*c+15}], v[{R}:{R+3}], v[{R+4+4*c}:{R+7+4*c}], v[{ACC+16*c}:{ACC+16*c+15}]")
                    E(f"v_lshrrev_b32 v{vT[1]}, 5, v{vL}")
                    E(f"v_lshl_add_u32 v{vT[1]}, v{vT[1]}, 6, s{sT0}")
                    k.wait_all_ds()
                    for i in range(4): k.ds(f"ds_read_b128 v[{Rr+4*i}:{Rr+4*i+3}], v{vT[1]} offset:{16*i}")
                    E(f"v_and_b32 v{vT[0]}, 31, v{vL}")
                    E(f"v_lshlrev_b32 v{vT[2]}, 5, v{vT[0]}")
                    E(f"v_add_u32 v{vT[2]}, {L_PAR}, v{vT[2]}")
                    k.ds(f"ds_read_b128 v[2:5], v{vT[2]}")
                    k.ds(f"ds_read_b64 v[6:7], v{vT[2]} offset:16")
                    k.ds(f"ds_read_b64 v[12:13], v{vT[2]} offset:24")
                    k.wait_all_ds()
                    for v in range(16):
                        E(f"v_mul_f32 v{ACC+v}, v{ACC+v}, v{Rr+v}"); E(f"v_mul_f32 v{ACC+16+v}, v{ACC+16+v}, v{Rr+v}")
                    ar, ai = 2, 3
                    er, ei, t1, t2 = R, R+1, R+2, R+3
                    E(f"v_mov_b32 v{er}, v{ACC}"); E(f"v_mov_b32 v{ei}, v{ACC+16}")
                    for v in range(1, 16):
                        E(f"v_fma_f32 v{t1}, v{ar}, v{er}, v{ACC+v}")
                        E(f"v_fma_f32 v{t2}, v{ar}, v{ei}, v{ACC+16+v}")
                        E(f"v_fma_f32 v{t1}, -v{ai}, v{ei}, v{t1}")
                        E(f"v_fma_f32 v{ei}, v{ai}, v{er}, v{t2}")
                        E(f"v_mov_b32 v{er}, v{t1}") if False else None
                        er, t1 = t1, er
                    if er != R: E(f"v_mov_b32 v{R}, v{er}")
                    E(f"v_lshrrev_b32 v{vT[1]}, 5, v{vL}")
                    E(f"s_lshl_b32 s{sT0}, s{sRG}, 9"); E(f"s_add_u32 s{sT0}, s{sT0}, {L_SEG}")
                    E(f"v_lshl_add_u32 v{vT[1]}, v{vT[1]}, 8, s{sT0}")
                    E(f"v_lshl_add_u32 v{vT[1]}, v{vT[0]}, 3, v{vT[1]}")
                    k.ds(f"ds_write_b64 v{vT[1]}, v[{R}:{R+1}]")
                    k.wait_all_ds()
                    free.extend(q); free.extend(q2); free.sort()
            if t == 9 and isY:
                free.sort(); q2 = [free.pop() for _ in range(5)]; q2.sort()
                assert q2[4] == q2[0] + 16
                Rr = q2[0]; R = q2[4]
                E(f"v_and_b32 v{vT[0]}, 31, v{vL}")
                E(f"v_lshlrev_b32 v{vT[1]}, 3, v{vT[0]}")
                E(f"v_add_u32 v{vT[1]}, {L_SEG}, v{vT[1]}")
                for s in range(8): k.ds(f"ds_read_b64 v[{Rr+2*s}:{Rr+2*s+1}], v{vT[1]} offset:{s*256}")
                E(f"v_lshrrev_b32 v{vT[2]}, 5, v{vL}")
                E(f"s_lshl_b32 s{sT0}, s{sRG}, 1")
                E(f"v_add_u32 v{vT[2]}, s{sT0}, v{vT[2]}")
                pr, pi_ = 1, 8
                E(f"v_mov_b32 v{pr}, 0"); E(f"v_mov_b32 v{pi_}, 0")
                k.wait_all_ds()
                a16r, a16i = 4, 5
                cr, ci = Rr, Rr+1
                for s in range(1, 8):
                    E(f"v_cmp_eq_u32 vcc, {s}, v{vT[2]}")
                    nr, ni = Rr+2*s, Rr+2*s+1
                    E(f"v_fmac_f32 v{nr}, v{a16r}, v{cr}")
                    E(f"v_fmac_f32 v{ni}, v{a16r}, v{ci}")
                    E(f"v_cndmask_b32 v{pr}, v{pr}, v{cr}, vcc")
                    E(f"v_cndmask_b32 v{pi_}, v{pi_}, v{ci}, vcc")
                    E(f"v_fma_f32 v{nr}, -v{a16i}, v{ci}, v{nr}")
                    E(f"v_fmac_f32 v{ni}, v{a16i}, v{cr}")
                    cr, ci = nr, ni
                E(f"v_mov_b32 v{R}, v{cr}"); E(f"v_mov_b32 v{R+1}, s{sTAG}"); E(f"v_mov_b32 v{R+2}, v{ci}"); E(f"v_mov_b32 v{R+3}, s{sTAG}")
                E(f"v_lshlrev_b32 v{vT[1]}, 4, v{vL}")
                E(f"v_mov_b32 v{vT[3]}, {OOB}")
                E(f"v_cmp_gt_u32 vcc, 32, v{vL}")
                E(f"s_lshl_b32 s{sT0}, s{sCS}, 4"); E(f"s_add_u32 s{sT0}, s{sT0}, s{sRB}"); E(f"s_lshl_b32 s{sT0}, s{sT0}, 9")
                E(f"s_add_u32 s{sT0}, s{sT0}, {GR_OFF}")
                E(f"s_cmp_eq_u32 s{sRG}, 0")
                E(f"s_cselect_b32 s{sT0}, s{sT0}, {OOB}")
                E(f"v_cndmask_b32 v{vT[1]}, v{vT[3]}, v{vT[1]}, vcc")
                k.vm(f"buffer_store_dwordx4 v[{R}:{R+3}], v{vT[1]}, s[{sWS}:{sWS+3}], s{sT0} offen sc0 sc1")
                E("s_nop 1")
                free.extend(q2); free.sort()
            run_step(t)
            if t == 7:
                E(f"v_add_f32 v{vS}, v{vS}, v{vS2}"); E(f"v_add_f32 v{vQ}, v{vQ}, v{vQ2}")
                E(f"v_and_b32 v{vT[0]}, 31, v{vL}")
                E(f"v_lshrrev_b32 v{vT[1]}, 5, v{vL}")
                E(f"s_lshl_b32 s{sT0}, s{sRG}, 10"); E(f"s_add_u32 s{sT0}, s{sT0}, {L_STAT + (0 if isY else 16)}")
                E(f"v_lshl_add_u32 v{vT[0]}, v{vT[0]}, 5, s{sT0}")
                E(f"v_lshl_add_u32 v{vT[0]}, v{vT[1]}, 3, v{vT[0]}")
                k.ds(f"ds_write_b64 v{vT[0]}, v[{vS}:{vS+1}]")
                if isY:
                    E(f"s_lshl_b32 s{sT0}, s{sRG}, 9"); E(f"s_add_u32 s{sT0}, s{sT0}, {L_CSB}")
                    E(f"v_lshl_add_u32 v{vT[0]}, v{vL}, 3, s{sT0}")
                    k.ds(f"ds_write_b64 v{vT[0]}, v[{vCS[0]}:{vCS[0]+1}]")
        E(f"s_lshl_b32 s{sT0}, s{sW}, 10"); E(f"s_add_u32 s{sT0}, s{sT0}, {L_CSW}")
        E(f"v_lshl_add_u32 v{vT[0]}, v{vL}, 4, s{sT0}")
        k.ds(f"ds_write_b128 v{vT[0]}, v[{vCS[0]}:{vCS[0]+3}]")
        k.wait_all_ds()
        E("s_barrier")
        R = FB
        E(f"v_lshlrev_b32 v{vT[0]}, 4, v{vL}")
        E(f"v_add_u32 v{vT[0]}, {L_CSW + (0 if isY else 4096)}, v{vT[0]}")
        for w in range(4): k.ds(f"ds_read_b128 v[{R+4*w}:{R+4*w+3}], v{vT[0]} offset:{w*1024}")
        MF = R + 16
        mfrag(MF, vM)
        E(f"v_mul_f32 v{vRS}, v{vRS}, v{vRS}")
        E(f"v_lshlrev_b32 v{vT[1]}, 4, v{vL}")
        E(f"s_lshl_b32 s{sT0}, s{sRB}, 2"); E(f"s_add_u32 s{sT0}, s{sT0}, s{sRG}"); E(f"s_mul_i32 s{sT1}, s{sT0}, 86")
        E(f"s_lshl_b32 s{sT2}, s{sFT0}, 1"); E(f"s_add_u32 s{sT1}, s{sT1}, s{sT2}"); E(f"s_lshl_b32 s{sT1}, s{sT1}, 10")
        if HH_OFF: E(f"s_add_u32 s{sT1}, s{sT1}, {HH_OFF}")
        k.wait_all_ds()
        tl4 = [2, 3] if isY else [0, 1, 2, 3]
        for a in tl4:
            E(f"v_add_f32 v{R+a}, v{R+a}, v{R+4+a}"); E(f"v_add_f32 v{R+8+a}, v{R+8+a}, v{R+12+a}")
        for a in tl4: E(f"v_add_f32 v{R+a}, v{R+a}, v{R+8+a}")
        CF = [R+4, R+8, R+12, R+20]
        for a in tl4:
            csfrag(CF[a], R+a, vT[0])
            d = ACC + 16*a
            E(f"v_mfma_f32_32x32x16_bf16 v[{d}:{d+15}], v[{CF[a]}:{CF[a]+3}], v[{MF}:{MF+3}], v[{d}:{d+15}]")
        tiles = [(0, 2)] if isY else [(1, 0), (2, 2)]
        for (j3, at) in tiles:
            G, U = ACC + 16*at, ACC + 16*(at+1)
            for v in range(16):
                E(f"v_max_f32 v{G+v}, 0, v{G+v}")
                E(f"v_mul_f32 v{U+v}, v{vRS}, v{U+v}")
            for v in range(16): E(f"v_mul_f32 v{G+v}, v{G+v}, v{U+v}")
            for v in range(0, 16, 2): E(f"v_cvt_pk_bf16_f32 v{U+v//2}, v{G+v}, v{G+v+1}")
            E(f"s_add_u32 s{sT2}, s{sT1}, {j3*2048}")
            if j3 == 2: E(f"s_add_u32 s{sT2}, s{sT2}, s{sT3OFF}")
            for s in range(2):
                k.vm(f"buffer_store_dwordx4 v[{U+4*s}:{U+4*s+3}], v{vT[1]}, s[{sWS}:{sWS+3}], s{sT2} offen offset:{s*1024}")
        if not isY:
            k.wait(vm=atok)
            E(f"v_mov_b32 v{vT[0]}, {OOB}")
            E(f"s_movk_i32 s{sT0}, 255")
            E(f"v_cmp_eq_u32 vcc, s{sT0}, v{vT[4]}")
            E(f"v_mov_b32 v{vT[2]}, s{sTAG}")
            E(f"v_cndmask_b32 v{vT[0]}, v{vT[0]}, v{vT[3]}, vcc")
            E(f"s_mov_b32 s{sT1}, {EP_OFF}")
            k.vm(f"buffer_store_dword v{vT[2]}, v{vT[0]}, s[{sWS}:{sWS+3}], s{sT1} offen")
            return
        GRV = [FB + 4*i for i in range(8)] + [ACC + 32 + 4*i for i in range(7)]
        E(f"v_and_b32 v{vT[0]}, 31, v{vL}")
        E(f"v_lshlrev_b32 v{vT[2]}, 4, v{vT[0]}")
        E(f"s_lshl_b32 s{sT0}, s{sCS}, 13"); E(f"s_add_u32 s{sT0}, s{sT0}, {GR_OFF}")
        E(f"s_add_u32 s{sT1}, s{sT0}, 4096")
        E(f"v_lshrrev_b32 v{vT[3]}, 5, v{vL}")
        E(f"s_lshl_b32 s{sT2}, s{sRG}, 9"); E(f"s_add_u32 s{sT2}, s{sT2}, {L_ASEG}")
        E(f"v_lshl_add_u32 v{vT[3]}, v{vT[3]}, 8, s{sT2}")
        E(f"v_lshl_add_u32 v{vT[3]}, v{vT[0]}, 3, v{vT[3]}")
        E(f"ds_read_b64 v[14:15], v{vT[3]}")
        gr, gi = 16, 17
        E("RESET_poll:")
        E("s_waitcnt vmcnt(0)")
        E("K1_POLL:")
        for rbp in range(15):
            E(f"s_cmp_le_u32 s{sRB}, {rbp}"); E("s_cbranch_scc1 K1_POLL_W")
            so = sT0 if rbp < 8 else sT1
            E(f"buffer_load_dwordx4 v[{GRV[rbp]}:{GRV[rbp]+3}], v{vT[2]}, s[{sWS}:{sWS+3}], s{so} offen offset:{(rbp%8)*512} sc0 sc1")
        E("K1_POLL_W:")
        E(f"v_mov_b32 v{gr}, 0"); E(f"v_mov_b32 v{gi}, 0"); E(f"v_mov_b32 v{vT[4]}, 0")
        E("s_waitcnt vmcnt(0) lgkmcnt(0)")
        a128r, a128i = 6, 7
        for rbp in range(15):
            E(f"s_cmp_le_u32 s{sRB}, {rbp}"); E("s_cbranch_scc1 K1_POLL_C")
            q = GRV[rbp]
            E(f"v_xor_b32 v{q+1}, s{sTAG}, v{q+1}"); E(f"v_xor_b32 v{q+3}, s{sTAG}, v{q+3}")
            E(f"v_fmac_f32 v{q}, v{a128r}, v{gr}"); E(f"v_fmac_f32 v{q+2}, v{a128r}, v{gi}")
            E(f"v_or3_b32 v{vT[4]}, v{vT[4]}, v{q+1}, v{q+3}")
            E(f"v_fma_f32 v{q}, -v{a128i}, v{gi}, v{q}"); E(f"v_fma_f32 v{gi}, v{a128i}, v{gr}, v{q+2}")
            E(f"v_mov_b32 v{gr}, v{q}")
        E("K1_POLL_C:")
        E(f"v_cmp_ne_u32 vcc, 0, v{vT[4]}")
        E("s_nop 1")
        E("s_cmp_eq_u64 vcc, 0")
        E("s_cbranch_scc1 K1_GOT")
        E("s_sleep 2")
        E("s_branch K1_POLL")
        E("K1_GOT:")
        pr, pi_ = 1, 8; asr, asi = 14, 15
        E(f"v_fmac_f32 v{pr}, v{asr}, v{gr}"); E(f"v_fmac_f32 v{pi_}, v{asr}, v{gi}")
        E(f"v_fma_f32 v{pr}, -v{asi}, v{gi}, v{pr}"); E(f"v_fmac_f32 v{pi_}, v{asi}, v{gr}")
        ar, ai, c2r, c2i = 2, 3, 12, 13
        E(f"v_lshrrev_b32 v{vT[3]}, 5, v{vL}")
        E(f"v_mul_u32_u24 v{vT[3]}, 1280, v{vT[3]}")
        E(f"s_mul_i32 s{sT2}, s{sRG}, 5120"); E(f"s_add_u32 s{sT2}, s{sT2}, {L_HT}")
        E(f"v_lshl_add_u32 v{vT[3]}, v{vT[0]}, 1, v{vT[3]}")
        E(f"v_add_u32 v{vT[3]}, s{sT2}, v{vT[3]}")
        hr, hi = pr, pi_
        for v in range(16):
            ur, ui = ACC+v, ACC+16+v
            o1, o2 = FB + 2*(v%4), FB + 2*(v%4) + 1
            E(f"v_fmac_f32 v{ur}, v{ar}, v{hr}"); E(f"v_fmac_f32 v{ui}, v{ar}, v{hi}")
            E(f"v_fma_f32 v{ur}, -v{ai}, v{hi}, v{ur}"); E(f"v_fmac_f32 v{ui}, v{ai}, v{hr}")
            hr, hi = ur, ui
            E(f"v_mul_f32 v{o1}, v{c2r}, v{hr}"); E(f"v_mul_f32 v{o2}, v{c2r}, v{hi}")
            E(f"v_fma_f32 v{o1}, -v{c2i}, v{hi}, v{o1}"); E(f"v_fmac_f32 v{o2}, v{c2i}, v{hr}")
            pk = FB + 8 + v
            E(f"v_cvt_pk_bf16_f32 v{pk}, v{o1}, -v{o2}")
            E(f"ds_write_b16 v{vT[3]}, v{pk} offset:{v*80}")
            E(f"ds_write_b16_d16_hi v{vT[3]}, v{pk} offset:{2560 + v*80}")
        E(f"v_and_b32 v{vT[0]}, 3, v{vL}")
        E(f"v_bfe_u32 v{vT[2]}, v{vL}, 3, 2")
        E(f"v_lshl_add_u32 v{vT[0]}, v{vT[2]}, 2, v{vT[0]}")
        E(f"v_bfe_u32 v{vT[2]}, v{vL}, 2, 1")
        E(f"v_lshl_add_u32 v{vT[0]}, v{vT[2]}, 4, v{vT[0]}")
        E(f"v_mul_u32_u24 v{vT[0]}, 80, v{vT[0]}")
        E(f"v_lshrrev_b32 v{vT[2]}, 5, v{vL}")
        E(f"v_lshl_add_u32 v{vT[0]}, v{vT[2]}, 4, v{vT[0]}")
        E(f"v_add_u32 v{vT[0]}, s{sT2}, v{vT[0]}")
        E(f"s_lshl_b32 s{sT0}, s{sRB}, 2"); E(f"s_add_u32 s{sT0}, s{sT0}, s{sRG}"); E(f"s_lshl_b32 s{sT0}, s{sT0}, 16")
        E(f"s_lshl_b32 s{sT1}, s{sCS}, 11"); E(f"s_add_u32 s{sT0}, s{sT0}, s{sT1}"); E(f"s_add_u32 s{sT0}, s{sT0}, {HS_OFF}")
        E(f"s_add_u32 s{sT1}, s{sT0}, 32768")
        E("s_waitcnt lgkmcnt(0)")
        O = ACC + 32
        for c in range(2):
            for s in range(2):
                E(f"ds_read_b128 v[{O+8*c+4*s}:{O+8*c+4*s+3}], v{vT[0]} offset:{c*2560 + 32*s}")
        E("s_waitcnt lgkmcnt(0)")
        for c in range(2):
            for s in range(2):
                E(f"buffer_store_dwordx4 v[{O+8*c+4*s}:{O+8*c+4*s+3}], v{vT[1]}, s[{sWS}:{sWS+3}], s{sT0 if c==0 else sT1} offen offset:{s*1024}")

    path(True)
    E("s_branch K1_END")
    k.restore(st0)
    E("K1_Z:")
    E("RESET_z:")
    path(False)
    E("K1_END:")
    E("s_endpgm")
    n = k.finish()
    return k

if __name__ == "__main__":
    from gen_k2 import gen_k2
    k1 = gen_k1(); k2 = gen_k2()
    hdr = ["; two-kernel pipeline (generated by my own generator scripts)",
           f"; @launch kernel=ssm_k1_kernel grid=(256,1,1) block=(512,1,1) lds={LDS_K1}",
           "; @launch kernel=ssm_k2_kernel grid=(256,1,1) block=(512,1,1) lds=131072"]
    write_file("v1.s", hdr, [k1, k2])
```

```python
import re, sys

REG_RE = re.compile(r'^(-|\|)?(?:abs\()?([vas])(?:(\d+)|\[(\d+):(\d+)\])\)?\|?$')

def parse_operand(tok):
    tok = tok.strip()
    m = REG_RE.match(tok)
    if m:
        k = m.group(2)
        if m.group(3) is not None:
            return [(k, int(m.group(3)))]
        return [(k, i) for i in range(int(m.group(4)), int(m.group(5)) + 1)]
    if tok in ('vcc',): return [('x', 'vcc')]
    if tok in ('vcc_lo', 'vcc_hi'): return [('x', 'vcc')]
    if tok in ('exec', 'exec_lo', 'exec_hi'): return [('x', 'exec')]
    if tok == 'm0': return [('x', 'm0')]
    return []

def split_ops(rest):
    ops, depth, cur = [], 0, ''
    for ch in rest:
        if ch in '[(': depth += 1
        if ch in '])': depth -= 1
        if ch == ',' and depth == 0:
            ops.append(cur); cur = ''
        else:
            cur += ch
    if cur.strip(): ops.append(cur)
    return ops

TRANS = ('v_exp_f32', 'v_log_f32', 'v_rcp_f32', 'v_rsq_f32', 'v_sqrt_f32', 'v_sin_f32', 'v_cos_f32', 'v_rcp_iflag_f32')

class Ins:
    __slots__ = ('text', 'mn', 'kind', 'w', 'r', 'srcc', 'srcab', 'passes', 'states', 'dpp', 'label', 'target',
                 'lds_dma', 'wide_store_data', 'line', 'sconst', 'uncond')
    def __init__(self, text):
        self.text = text
        self.label = None; self.target = None; self.uncond = False
        self.w = set(); self.r = set(); self.srcc = set(); self.srcab = set(); self.passes = 0
        self.states = 1; self.dpp = False; self.lds_dma = False; self.wide_store_data = set(); self.sconst = set()
        t = text.split(';')[0].strip()
        if t.endswith(':'):
            self.kind = 'label'; self.label = t[:-1]; self.mn = ''; self.states = 0; return
        if not t or t.startswith('.'):
            self.kind = 'none'; self.mn = ''; self.states = 0; return
        parts = t.split(None, 1)
        mn = parts[0]; self.mn = mn
        rest = parts[1] if len(parts) > 1 else ''
        ops = split_ops(rest)
        mods = ''
        if ops:
            last = ops[-1].strip().split(None, 1)
            ops[-1] = last[0]
            mods = last[1] if len(last) > 1 else ''
        O = [parse_operand(o) for o in ops]
        base = mn.replace('_e32', '').replace('_e64', '').replace('_dpp', '')
        if mn.startswith('v_mfma'):
            self.kind = 'mfma'
            self.w = set(O[0]); self.srcab = set(O[1]) | set(O[2]); self.srcc = set(O[3])
            self.r = self.srcab | self.srcc
            self.passes = 8 if '32x32x16' in mn else 4 if '16x16x32' in mn else None
            assert self.passes, mn
        elif mn.startswith('v_'):
            self.kind = 'valu'
            if '_dpp' in mn or 'row_' in mods or 'quad_perm' in mods: self.dpp = True
            if base.startswith('v_cmp'):
                self.w = set(O[0])
                for o in O[1:]: self.r |= set(o)
                if base.startswith('v_cmpx'): self.w.add(('x', 'exec'))
            elif base in ('v_permlane16_swap_b32', 'v_permlane32_swap_b32'):
                self.w = set(O[0]) | set(O[1]); self.r = set(self.w)
            elif base in ('v_add_co_u32', 'v_sub_co_u32', 'v_addc_co_u32', 'v_subb_co_u32'):
                self.w = set(O[0]) | set(O[1])
                for o in O[2:]: self.r |= set(o)
            else:
                self.w = set(O[0])
                for o in O[1:]: self.r |= set(o)
                if base in ('v_fmac_f32', 'v_dot2c_f32_bf16', 'v_pk_fmac_f16', 'v_writelane_b32') or self.dpp:
                    self.r |= set(O[0])
            self.sconst = {x for x in self.r if x[0] == 's' or x == ('x', 'vcc')}
        elif mn.startswith('buffer_') or mn.startswith('global_'):
            self.kind = 'vmem'
            if mn in ('buffer_wbl2', 'buffer_inv'):
                pass
            elif 'lds' in mods.split():
                self.lds_dma = True
                for o in O: self.r |= set(o)
                self.r.add(('x', 'm0'))
            elif '_load_' in mn:
                self.w = set(O[0])
                for o in O[1:]: self.r |= set(o)
                if 'd16' in mn: self.r |= set(O[0])
            elif '_store_' in mn:
                for o in O: self.r |= set(o)
                if 'x4' in mn or 'x3' in mn:
                    self.wide_store_data = set(O[0]) if mn.startswith('buffer_') else set(O[1])
            elif '_atomic_' in mn:
                for o in O: self.r |= set(o)
                if 'sc0' in mods.split():
                    self.w = set(O[0]) if mn.startswith('buffer_') else set(O[0])
            else:
                raise ValueError(mn)
        elif mn.startswith('ds_'):
            self.kind = 'ds'
            if mn.startswith('ds_read') or mn.startswith('ds_bpermute') or mn.startswith('ds_swizzle') or mn.startswith('ds_permute'):
                self.w = set(O[0])
                for o in O[1:]: self.r |= set(o)
            else:
                for o in O: self.r |= set(o)
        elif mn.startswith('s_'):
            self.kind = 'salu'
            if mn == 's_nop':
                self.states = int(ops[0], 0) + 1
            elif mn in ('s_branch',) or mn.startswith('s_cbranch'):
                self.kind = 'branch'; self.target = ops[0].strip(); self.uncond = (mn == 's_branch')
            elif mn == 's_endpgm':
                self.kind = 'end'; self.uncond = True
            elif mn.startswith('s_load') or mn in ('s_memtime', 's_memrealtime'):
                self.kind = 'smem'
                self.w = set(O[0])
                for o in O[1:]: self.r |= set(o)
            elif mn.startswith('s_cmp') or mn.startswith('s_bitcmp') or mn in ('s_waitcnt', 's_barrier', 's_setprio', 's_sleep'):
                for o in O: self.r |= set(o)
            else:
                self.w = set(O[0])
                for o in O[1:]: self.r |= set(o)
                if 'saveexec' in mn: self.w.add(('x', 'exec'))
        else:
            raise ValueError("unknown instr: " + text)

def is_vgpr(x): return x[0] in ('v', 'a')

def hazard_need(p, c):
    need = 0
    pv = {x for x in p.w if is_vgpr(x)}
    ps = {x for x in p.w if x[0] == 's' or x == ('x', 'vcc')}
    if p.kind == 'valu':
        isdot = p.mn.startswith('v_dot')
        if c.kind == 'mfma' and pv & c.r: need = max(need, 3 if isdot else 2)
        if c.kind == 'vmem' and ps & c.r: need = max(need, 5)
        if c.kind == 'valu':
            if ps & c.sconst: need = max(need, 4 if c.mn.startswith(('v_readlane', 'v_writelane')) else 2)
            if c.mn.startswith(('v_readlane', 'v_readfirstlane')) and pv & c.r: need = max(need, 1)
            if c.dpp and pv & c.r: need = max(need, 2)
            if c.mn.startswith('v_permlane') and pv & c.r: need = max(need, 2)
            if p.mn.replace('_e32', '').replace('_e64', '') in TRANS and (pv & c.r or pv & c.w): need = max(need, 1)
            if isdot and (pv & (c.r | c.w)):
                same = (c.mn.split('_e')[0] == p.mn.split('_e')[0])
                if same:
                    ops = split_ops(c.text.split(';')[0].strip().split(None, 1)[1])
                    ab = set(parse_operand(ops[1].split()[0])) | set(parse_operand(ops[2].split()[0]))
                    if pv & ab: need = max(need, 3)
                else:
                    need = max(need, 3)
            if ('x', 'exec') in p.w: need = max(need, 5)
        if isdot and c.kind in ('vmem', 'ds') and pv & c.r: need = max(need, 3)
        if ('x', 'exec') in p.w and c.kind == 'mfma': need = max(need, 4)
    if p.kind == 'mfma':
        P = p.passes
        if c.kind == 'mfma':
            if p.w & c.srcab: need = max(need, P + 4)
            if p.w & c.srcc:
                if not (p.w == c.srcc and c.passes == P): need = max(need, P + 2)
            elif p.w & c.w: need = max(need, P + 4)
        elif c.kind in ('valu', 'vmem', 'ds'):
            if p.w & (c.r | c.w): need = max(need, P + 4)
        if c.kind == 'valu' and p.srcc & c.w: need = max(need, P - 1)
    if p.kind == 'salu' and ('x', 'm0') in p.w and c.kind == 'vmem' and c.lds_dma: need = max(need, 1)
    if p.kind == 'vmem' and p.wide_store_data:
        if p.wide_store_data & c.w: need = max(need, 2 if c.kind in ('valu', 'mfma') else 1)
    return need

def check_hazards(lines, name='', fix=False):
    while True:
        ins = [Ins(l) for l in lines]
        labels = {x.label: i for i, x in enumerate(ins) if x.kind == 'label'}
        preds = [[] for _ in ins]
        for i, x in enumerate(ins):
            if i + 1 < len(ins) and not x.uncond: preds[i + 1].append(i)
            if x.kind == 'branch':
                assert x.target in labels, x.target
                preds[labels[x.target]].append(i)
        probs = []
        for ci, c in enumerate(ins):
            if c.kind in ('label', 'none', 'branch', 'end', 'smem') or c.mn in ('s_nop', 's_waitcnt', 's_barrier'): continue
            if c.kind == 'salu' and not c.w: continue
            worst = 0; who = None
            stack = [(pi, 0) for pi in preds[ci]]
            seen = {}
            while stack:
                pi, dist = stack.pop()
                if dist >= 13: continue
                if seen.get(pi, 99) <= dist: continue
                seen[pi] = dist
                p = ins[pi]
                if p.states and p.kind not in ('branch', 'end'):
                    n = hazard_need(p, c)
                    if n - dist > worst: worst = n - dist; who = pi
                for q in preds[pi]: stack.append((q, dist + p.states))
            if worst > 0: probs.append((ci, worst, who))
        if not fix or not probs:
            return [(lines[c], w, lines[p]) for c, w, p in probs], lines
        out = list(lines)
        for ci, w, who in reversed(probs):
            out.insert(ci, f"s_nop {w-1}")
        lines = out

def check_waits(lines):
    vmq, lgq = [], []
    probs = []
    for l in lines:
        x = Ins(l)
        if x.kind == 'label' and x.label.startswith('RESET'):
            vmq, lgq = [], []
        if x.mn == 's_waitcnt':
            m = re.search(r'vmcnt\((\d+)\)', l)
            if m:
                n = int(m.group(1));
                while len(vmq) > n: vmq.pop(0)
            m = re.search(r'lgkmcnt\((\d+)\)', l)
            if m:
                n = int(m.group(1))
                if n > 0 and any(k == 'smem' for k, _ in lgq): probs.append(("counted lgkm with smem outstanding", l))
                while len(lgq) > n: lgq.pop(0)
            continue
        touched = x.r | x.w
        for q in vmq:
            if q & touched: probs.append(("vm", l))
        for _, q in lgq:
            if q & touched: probs.append(("lgkm", l))
        if x.kind == 'vmem' and x.mn not in ('buffer_wbl2', 'buffer_inv'): vmq.append(set(x.w))
        if x.kind == 'ds': lgq.append(('ds', set(x.w)))
        if x.kind == 'smem': lgq.append(('smem', set(x.w)))
    return probs

class Kern:
    def __init__(self, name, vgpr, agpr, sgpr=96):
        self.name = name; self.L = []; self.vgpr = vgpr; self.agpr = agpr; self.sgpr = sgpr
        self.nvm = 0; self.nds = 0
        self.vm_done = -1; self.ds_done = -1
    def __call__(self, s):
        for l in s.strip().split('\n'):
            l = l.strip()
            if l: self.L.append(l)
    def vm(self, s):
        self(s); self.nvm += 1; return self.nvm - 1
    def ds(self, s):
        self(s); self.nds += 1; return self.nds - 1
    def wait(self, vm=None, ds=None, force=False):
        parts = []
        if vm is not None and (vm > self.vm_done or force):
            n = self.nvm - 1 - vm
            assert n >= 0
            if n <= 63:
                parts.append(f"vmcnt({n})"); self.vm_done = max(self.vm_done, vm)
            else:
                parts.append("vmcnt(63)")
        if ds is not None and (ds > self.ds_done or force):
            n = self.nds - 1 - ds
            assert n >= 0
            n = min(n, 15)
            parts.append(f"lgkmcnt({n})"); self.ds_done = max(self.ds_done, self.nds - 1 - n)
        if parts: self("s_waitcnt " + " ".join(parts))
    def wait_all_ds(self):
        if self.nds - 1 > self.ds_done:
            self("s_waitcnt lgkmcnt(0)"); self.ds_done = self.nds - 1
    def wait_all_vm(self):
        self("s_waitcnt vmcnt(0)"); self.vm_done = self.nvm - 1
    def state(self): return (self.nvm, self.nds, self.vm_done, self.ds_done)
    def restore(self, st): self.nvm, self.nds, self.vm_done, self.ds_done = st
    def finish(self, fix=True):
        probs, lines = check_hazards(self.L, self.name, fix=fix)
        for p in probs: print("HAZARD", self.name, p, file=sys.stderr)
        nfix = len(lines) - len(self.L)
        self.L = lines
        for p in check_waits(self.L): print("WAIT?", self.name, p, file=sys.stderr)
        return nfix
    def text(self):
        n = self.name
        out = [f".globl {n}", ".p2align 8", f".type {n},@function", f"{n}:"]
        for l in self.L:
            out.append(l if l.endswith(':') else "    " + l)
        return "\n".join(out)
    def desc(self):
        acc_off = (self.vgpr + 3) // 4 * 4
        nfv = acc_off + self.agpr if self.agpr else self.vgpr
        return "\n".join([".p2align 6", f".amdhsa_kernel {self.name}",
            f"  .amdhsa_next_free_vgpr {nfv}", f"  .amdhsa_next_free_sgpr {self.sgpr}",
            f"  .amdhsa_accum_offset {acc_off}", "  .amdhsa_group_segment_fixed_size 0",
            "  .amdhsa_kernarg_size 128", "  .amdhsa_user_sgpr_count 2",
            "  .amdhsa_user_sgpr_kernarg_segment_ptr 1", "  .amdhsa_system_sgpr_workgroup_id_x 1",
            "  .amdhsa_float_denorm_mode_32 3",
            ".end_amdhsa_kernel"])

def write_file(path, header_lines, kerns):
    out = list(header_lines)
    out.append('.amdgcn_target "amdgcn-amd-amdhsa--gfx950"')
    out.append(".text")
    for k in kerns: out.append(k.text())
    out.append('.section .rodata,"a"')
    for k in kerns: out.append(k.desc())
    open(path, "w").write("\n".join(out) + "\n")


def add_stamps(k, kidx, endlabel, ws_srd, cyc=False, nw=8):
    out = []
    for l in k.L:
        if l.startswith("; MARK"):
            n = int(l.split()[2])
            out.append(f"{'s_memtime' if cyc else 's_memrealtime'} s[{64+2*n}:{65+2*n}]")
            continue
        if l == endlabel + ":":
            out.append("STAMP_%d:" % kidx)
            out.append("s_waitcnt vmcnt(0) lgkmcnt(0)")
            out.append("s_memrealtime s[94:95]")
            out.append("s_memtime s[90:91]")
            out.append("v_lshrrev_b32 v1, 6, v0")
            out.append(f"s_mul_i32 s3, s2, {nw}")
            out.append("v_add_u32 v1, s3, v1")
            out.append("v_lshlrev_b32 v1, 6, v1")
            out.append("s_waitcnt lgkmcnt(0)")
            regs = [92, 94] + [64 + 2*n for n in range(10)] + [88, 90, 88, 90]
            for i, s in enumerate(regs):
                out.append(f"v_mov_b32 v{4+i}, s{s}")
            out.append(f"s_mov_b32 s3, {(25<<19) + kidx*131072}")
            for q in range(4):
                out.append(f"buffer_store_dwordx4 v[{4+4*q}:{7+4*q}], v1, s[{ws_srd}:{ws_srd+3}], s3 offen offset:{16*q}")
        if l == "s_branch " + endlabel:
            l = "s_branch STAMP_%d" % kidx
        out.append(l)
    out.insert(2, "s_memrealtime s[92:93]")
    out.insert(3, "s_memtime s[88:89]")
    k.L = out
```

```python
HH_OFF   = 0
HS_OFF   = 6 << 20
ST_OFF   = 10 << 20
FL_OFF   = (10 << 20) + (1 << 16)
SG_OFF   = (21 << 19)
GR_OFF   = 11 << 20
CW_OFF   = (23 << 19)
EP_OFF   = 12 << 20
WS_SIZE  = 13 << 20
OOB      = 0x40000000
```

```python
from asmgen import *
from layout import *

LX = 0; LB = 65536; LW = 98304; LM = 147456
L_RST = LM; L_SEG = LM + 512; L_PAR = LM + 2560; L_ASEG = LM + 3584; L_FLG = LM + 5632
LDS_F = LM + 5632 + 64
L_HT = LB
KNAME = "recurrent_scan__ssm_conv_s5__glu_gated_reglu__prompt_kernel"

DEF_SCHED = [([0],[0]), ([1],[1]), ([2,3],[2]), ([4,5],[3]), ([6,7],[]), ([],[4,5,6,7]), ([],[8,9,10,11]), ([],[12,13,14,15])]

def gen_f(name=KNAME, sched=DEF_SCHED, nt="", defer=2, lb_at=15, gr_at=12, SC="sc1", ahead=2):
    k = Kern(name, vgpr=128, agpr=128, sgpr=100)
    E = k
    NS = len(sched)
    ACC = 64; FB = 32
    vXR = [1, 2, 3, 4]; vBR = [5, 6, 7, 8]; vWR = [9, 10]; vXD = [11, 12]; vBD = [13, 14]; vWD = [15, 16, 17]
    vS, vQ, vS2, vQ2 = 18, 19, 20, 21
    vMK = 22; vX23 = 23; vCW = [24, 25]; vL = 26; vT = [27, 28, 29, 30, 31]
    sX, sBm, sWm, sWS, sP0, sP1, sP2 = 8, 12, 16, 20, 28, 32, 36
    sW, sRG, sRB, sCS, sROT, sFT0, sTAG, sCWB = 40, 41, 42, 43, 44, 45, 46, 47
    sXB, sBB, sWB, sT3OFF = 48, 49, 50, 51
    sT0, sT1, sT2, sT3 = 52, 53, 54, 55
    sMX, sMB, sMW, sMASK = 56, 57, 58, 59
    sI0, sI1, sI2, sI3 = 60, 61, 62, 63
    sSGB = 98
    E("s_cmp_ge_u32 s2, 256")
    E("s_cbranch_scc1 F_END")
    E("s_load_dwordx8 s[64:71], s[0:1], 0")
    E("s_load_dwordx2 s[72:73], s[0:1], 32")
    E("s_load_dwordx4 s[76:79], s[0:1], 80")
    E("s_load_dwordx2 s[82:83], s[0:1], 120")
    E("s_load_dwordx2 s[74:75], s[0:1], 56")
    E("s_load_dwordx4 s[4:7], s[0:1], 40")
    E("s_load_dwordx4 s[24:27], s[0:1], 96")
    E("s_load_dwordx2 s[96:97], s[0:1], 64")
    E(f"v_lshrrev_b32 v{vT[0]}, 6, v0")
    E(f"v_and_b32 v{vL}, 63, v0")
    E(f"v_readfirstlane_b32 s{sW}, v{vT[0]}")
    E(f"s_and_b32 s{sT0}, s2, 7"); E(f"s_lshr_b32 s{sT1}, s2, 3")
    E(f"s_and_b32 s{sRG}, s{sW}, 3")
    E(f"s_lshr_b32 s{sRB}, s{sT0}, 2"); E(f"s_lshl_b32 s{sRB}, s{sRB}, 3")
    E(f"s_and_b32 s{sT2}, s{sT1}, 7"); E(f"s_add_u32 s{sRB}, s{sRB}, s{sT2}")
    E(f"s_and_b32 s{sCS}, s{sT0}, 3"); E(f"s_lshl_b32 s{sCS}, s{sCS}, 2")
    E(f"s_lshr_b32 s{sT2}, s{sT1}, 3"); E(f"s_add_u32 s{sCS}, s{sCS}, s{sT2}")
    E(f"s_lshl_b32 s{sROT}, s{sCS}, 1"); E(f"s_add_u32 s{sROT}, s{sROT}, s{sRB}"); E(f"s_and_b32 s{sROT}, s{sROT}, 7")
    E(f"s_mul_i32 s{sT2}, s{sCS}, 3")
    E(f"s_lshl_b32 s{sT3}, s{sCS}, 1"); E(f"s_add_u32 s{sT3}, s{sT3}, 11")
    E(f"s_cmp_lt_u32 s{sCS}, 11")
    E(f"s_cselect_b32 s{sFT0}, s{sT2}, s{sT3}")
    E(f"s_cselect_b32 s{sT3OFF}, 0, {OOB}")
    E(f"s_mov_b32 s{sMASK}, 0xffff0000")
    r_, pos_, g_, a_, b_ = vT
    E(f"v_lshrrev_b32 v{r_}, 3, v{vL}")
    E(f"v_and_b32 v{pos_}, 7, v{vL}")
    E(f"v_lshrrev_b32 v{a_}, 1, v{r_}")
    E(f"v_xor_b32 v{a_}, v{a_}, v{pos_}")
    E(f"v_lshlrev_b32 v{a_}, 4, v{a_}")
    E(f"v_lshl_add_u32 v{vBD[0]}, v{r_}, 10, v{a_}")
    E(f"v_xor_b32 v{vBD[1]}, 64, v{vBD[0]}")
    E(f"v_lshrrev_b32 v{b_}, 2, v{r_}")
    E(f"v_lshlrev_b32 v{b_}, 4, v{b_}")
    E(f"v_and_or_b32 v{b_}, v{r_}, 3, v{b_}")
    E(f"v_lshl_add_u32 v{vXD[0]}, v{b_}, 10, v{a_}")
    E(f"v_xor_b32 v{vXD[1]}, 64, v{vXD[0]}")
    for ph in range(3):
        E(f"v_add_u32 v{a_}, {64*ph}, v{vL}")
        E(f"v_mul_u32_u24 v{b_}, 0x556, v{a_}")
        E(f"v_lshrrev_b32 v{b_}, 14, v{b_}")
        E(f"v_mul_u32_u24 v{g_}, 12, v{b_}")
        E(f"v_sub_u32 v{a_}, v{a_}, v{g_}")
        E(f"v_mul_u32_u24 v{b_}, 0xac0, v{b_}")
        E(f"v_lshl_add_u32 v{vWD[ph]}, v{a_}, 4, v{b_}")
        E(f"v_cmp_lt_u32 vcc, 7, v{a_}")
        E(f"v_mov_b32 v{g_}, s{sT3OFF}")
        E(f"v_cndmask_b32 v{g_}, 0, v{g_}, vcc")
        E(f"v_add_u32 v{vWD[ph]}, v{vWD[ph]}, v{g_}")
    E(f"s_lshl_b32 s{sXB}, s{sRB}, 17"); E(f"s_lshl_b32 s{sT2}, s{sRG}, 15"); E(f"s_add_u32 s{sXB}, s{sXB}, s{sT2}")
    E(f"s_lshl_b32 s{sBB}, s{sCS}, 15"); E(f"s_and_b32 s{sT3}, s{sRG}, 1"); E(f"s_lshl_b32 s{sT2}, s{sT3}, 14"); E(f"s_add_u32 s{sBB}, s{sBB}, s{sT2}")
    E(f"s_mul_i32 s{sWB}, s{sT3}, {16*2752}"); E(f"s_lshl_b32 s{sT2}, s{sFT0}, 6"); E(f"s_add_u32 s{sWB}, s{sWB}, s{sT2}")
    E(f"s_lshl_b32 s{sMX}, s{sRG}, 12")
    E(f"s_lshl_b32 s{sMB}, s{sRG}, 11"); E(f"s_add_u32 s{sMB}, s{sMB}, {LB}")
    E(f"s_mul_i32 s{sMW}, s{sRG}, 3072")
    E("s_waitcnt lgkmcnt(0)")
    def srd(s, lo, n):
        E(f"s_mov_b32 s{s}, s{lo}"); E(f"s_mov_b32 s{s+1}, s{lo+1}"); E(f"s_mov_b32 s{s+2}, {n}"); E(f"s_mov_b32 s{s+3}, 0x00020000")
    srd(sX, 64, 2097152)
    E(f"s_cmp_lt_u32 s{sRG}, 2")
    E(f"s_cselect_b32 s{sBm}, s70, s72"); E(f"s_cselect_b32 s{sBm+1}, s71, s73"); E(f"s_mov_b32 s{sBm+2}, {512*1024}"); E(f"s_mov_b32 s{sBm+3}, 0x00020000")
    E(f"s_cselect_b32 s{sWm}, s76, s78"); E(f"s_cselect_b32 s{sWm+1}, s77, s79"); E(f"s_mov_b32 s{sWm+2}, {512*2752}"); E(f"s_mov_b32 s{sWm+3}, 0x00020000")
    srd(sWS, 82, WS_SIZE)
    E(f"s_add_u32 s84, s82, {EP_OFF}"); E("s_addc_u32 s85, s83, 0")
    E(f"s_load_dword s{sTAG}, s[84:85], 0")
    E(f"s_cmp_ge_u32 s{sW}, 4")
    E("s_cbranch_scc1 F_Z")
    st0 = k.state()
    cnt = [0]
    def lab(p):
        cnt[0] += 1; return f"F_{p}{cnt[0]}"
    def round1(v):
        E(f"v_cvt_pk_bf16_f32 v{v}, v{v}, v{v}")
        E(f"v_and_b32 v{v}, s{sMASK}, v{v}")
    def late_setup():
        E(f"s_lshl_b32 s{sCWB}, s{sCS}, 1"); E(f"s_lshr_b32 s{sT2}, s{sRB}, 3"); E(f"s_add_u32 s{sCWB}, s{sCWB}, s{sT2}")
        E(f"s_lshl_b32 s{sCWB}, s{sCWB}, 14"); E(f"s_add_u32 s{sCWB}, s{sCWB}, {CW_OFF}")
        E(f"s_lshl_b32 s{sSGB}, s{sRB}, 2"); E(f"s_lshr_b32 s{sT2}, s{sCS}, 2"); E(f"s_add_u32 s{sSGB}, s{sSGB}, s{sT2}")
        E(f"s_lshl_b32 s{sSGB}, s{sSGB}, 2"); E(f"s_add_u32 s{sSGB}, s{sSGB}, s{sRG}"); E(f"s_lshl_b32 s{sSGB}, s{sSGB}, 11")
        E(f"s_add_u32 s{sSGB}, s{sSGB}, {SG_OFF}")
        E(f"v_lshrrev_b32 v{g_}, 5, v{vL}")
        E(f"v_and_b32 v{a_}, 31, v{vL}")
        E(f"v_bfe_u32 v{b_}, v{vL}, 1, 3")
        E(f"v_xor_b32 v{b_}, v{b_}, v{g_}")
        E(f"v_lshlrev_b32 v{b_}, 4, v{b_}")
        E(f"v_lshl_add_u32 v{a_}, v{a_}, 7, v{b_}")
        E(f"v_add_u32 v{vXR[0]}, s{sMX}, v{a_}")
        E(f"v_add_u32 v{vBR[0]}, {LB}, v{a_}")
        for j in range(1, 4):
            E(f"v_xor_b32 v{vXR[j]}, {j<<5}, v{vXR[0]}")
            E(f"v_xor_b32 v{vBR[j]}, {j<<5}, v{vBR[0]}")
        E(f"v_bfe_u32 v{a_}, v{vL}, 2, 2")
        E(f"v_lshl_add_u32 v{a_}, v{g_}, 3, v{a_}")
        E(f"v_mul_u32_u24 v{a_}, 192, v{a_}")
        E(f"v_bfe_u32 v{b_}, v{vL}, 4, 1")
        E(f"v_lshl_add_u32 v{a_}, v{b_}, 5, v{a_}")
        E(f"v_and_b32 v{b_}, 3, v{vL}")
        E(f"v_lshl_add_u32 v{vWR[1]}, v{b_}, 3, v{a_}")
        E(f"v_add_u32 v{vWR[0]}, {LW}, v{vWR[1]}")
        E(f"v_mov_b32 v{vMK}, s{sMASK}")
        for v in (vS, vQ, vS2, vQ2, *vCW): E(f"v_mov_b32 v{v}, 0")
        for i in range(64): E(f"v_mov_b32 v{ACC+i}, 0")

    cons = {}
    for t, (xs_, ws_) in enumerate(sched):
        for c in xs_: cons[('xb', c)] = t
        for u in ws_: cons[('w', u)] = t
    loc_free = {('W', s): -1 for s in range(4)}
    for s in range(4): loc_free[('X', s)] = cons[('xb', 4+s)] + 1
    wloc = {}; ready = {}
    for c in range(8): ready[('xb', c)] = -1 if c < 4 else cons[('xb', c-4)] + 1
    for u in range(16):
        l = min(loc_free, key=lambda x: (loc_free[x], x[0] != 'W', x[1]))
        wloc[u] = (0, l[1]*12288) if l[0] == 'W' else (1, l[1]*16384)
        ready[('w', u)] = loc_free[l]
        assert ready[('w', u)] < cons[('w', u)], (u, ready[('w', u)], cons[('w', u)])
        loc_free[l] = cons[('w', u)] + 1
    order = sorted(cons, key=lambda x: (cons[x], x[0] != 'xb', x[1]))
    issue_at = {}; last = -1
    for un in order:
        a = max(ready[un], last, -1 if cons[un] <= 1 else max(0, cons[un] - ahead))
        assert a < cons[un], un
        issue_at[un] = a; last = a
    last_issue = max(issue_at.values())

    def path(isY):
        tl = "Y" if isY else "Z"
        unit_tok = {}
        def unit_ops(un):
            kind, i = un
            ops = []
            pro = issue_at[un] < 0
            if kind == 'xb':
                c = i; slot = c % 4
                xq_ = ([0, 1] if isY else [2, 3]) if pro else ([] if isY else [0, 1, 2, 3])
                do_b = isY if pro else (not isY)
                first = True
                for q in xq_:
                    def op(q=q, first=first):
                        if first:
                            E(f"s_add_u32 s{sI0}, s{sROT}, {c}"); E(f"s_and_b32 s{sI0}, s{sI0}, 7"); E(f"s_lshl_b32 s{sI0}, s{sI0}, 7")
                            E(f"s_add_u32 s{sI1}, s{sI0}, s{sXB}")
                        E(f"s_add_u32 m0, s{sMX}, {LX + slot*16384 + q*1024}")
                        E(f"s_add_u32 s{sI3}, s{sI1}, {q*4096}")
                        unit_tok[un] = k.vm(f"buffer_load_dwordx4 v{vXD[q&1]}, s[{sX}:{sX+3}], s{sI3} offen {nt} lds")
                    ops.append(op); first = False
                if do_b:
                    for qq in range(2):
                        def op(qq=qq):
                            E(f"s_add_u32 m0, s{sMB}, {slot*8192 + qq*1024}")
                            E(f"s_add_u32 s{sI3}, s{sI0}, s{sBB}")
                            if qq: E(f"s_add_u32 s{sI3}, s{sI3}, 8192")
                            unit_tok[un] = k.vm(f"buffer_load_dwordx4 v{vBD[qq]}, s[{sBm}:{sBm+3}], s{sI3} offen {nt} lds")
                        ops.append(op)
            elif not isY:
                u = i
                reg, base = wloc[u]
                dest = (LW if reg == 0 else LX) + base
                for ph in range(3):
                    def op(ph=ph):
                        if ph == 0:
                            E(f"s_lshl_b32 s{sI2}, s{sROT}, 1"); E(f"s_add_u32 s{sI2}, s{sI2}, {u}"); E(f"s_and_b32 s{sI2}, s{sI2}, 15")
                            E(f"s_mul_i32 s{sI2}, s{sI2}, {32*2752}"); E(f"s_add_u32 s{sI2}, s{sI2}, s{sWB}")
                        E(f"s_add_u32 m0, s{sMW}, {dest + ph*1024}")
                        unit_tok[un] = k.vm(f"buffer_load_dwordx4 v{vWD[ph]}, s[{sWm}:{sWm+3}], s{sI2} offen {nt} lds")
                    ops.append(op)
            return ops
        def ops_at(t):
            out = []
            for un in order:
                if issue_at[un] == t: out += unit_ops(un)
            return out

        free = [FB + 4*i for i in range(8)]
        def take(n):
            free.sort()
            for i in range(len(free) - n + 1):
                if free[i+n-1] == free[i] + 4*(n-1):
                    q = free[i:i+n]; del free[i:i+n]; return q
            raise AssertionError(free)
        if isY:
            srd(sP0, 66, 1024); srd(sP1, 68, 1024); srd(sP2, 74, 1024)
            E(f"v_and_b32 v{vT[0]}, 31, v{vL}")
            E(f"s_lshl_b32 s{sT0}, s{sCS}, 6")
            E(f"v_lshl_add_u32 v{vT[0]}, v{vT[0]}, 1, s{sT0}")
            RAW = FB
            k.vm(f"buffer_load_ushort v{RAW}, v{vT[0]}, s[{sP0}:{sP0+3}], 0 offen")
            k.vm(f"buffer_load_ushort v{RAW+1}, v{vT[0]}, s[{sP1}:{sP1+3}], 0 offen")
            ptok = k.vm(f"buffer_load_ushort v{RAW+2}, v{vT[0]}, s[{sP2}:{sP2+3}], 0 offen")
        for op in ops_at(-1): op()
        late_setup()
        E("s_waitcnt lgkmcnt(0)")
        E(f"s_mul_i32 s{sTAG}, s{sTAG}, 0x9E3779B1"); E(f"s_add_u32 s{sTAG}, s{sTAG}, 0x7F4A7C15")
        if not isY:
            E(f"v_mov_b32 v{vT[0]}, {L_FLG}")
            k.ds(f"ds_write_b128 v{vT[0]}, v[{ACC}:{ACC+3}]")
        else:
            k.wait(vm=ptok)
            PV = FB + 4
            lre, lim, ldt, zr, zi, nn, mg, ph, den = [PV+i for i in range(9)]
            O = PV + 12
            E(f"v_lshlrev_b32 v{lre}, 16, v{RAW}"); E(f"v_lshlrev_b32 v{lim}, 16, v{RAW+1}"); E(f"v_lshlrev_b32 v{ldt}, 16, v{RAW+2}")
            E(f"v_mul_f32 v{ldt}, 0x3fb8aa3b, v{ldt}")
            E(f"v_exp_f32 v{ldt}, v{ldt}")
            round1(ldt)
            E(f"v_mul_f32 v{zr}, v{ldt}, v{lre}")
            E(f"v_mul_f32 v{zi}, v{ldt}, v{lim}")
            E(f"v_mul_f32 v{zr}, 0x3fb8aa3b, v{zr}")
            E(f"v_mul_f32 v{zi}, 0.15915494309189535, v{zi}")
            E(f"v_lshrrev_b32 v{nn}, 5, v{vL}")
            E(f"s_lshl_b32 s{sT0}, s{sRG}, 1")
            E(f"v_add_u32 v{nn}, s{sT0}, v{nn}")
            E(f"v_lshlrev_b32 v{vT[1]}, 8, v{nn}")
            E(f"v_lshlrev_b32 v{nn}, 4, v{nn}")
            E(f"v_cvt_f32_u32 v{nn}, v{nn}")
            for (n, o) in (("1.0", O), ("0x41800000", O+2), ("0x43000000", O+4), (f"v{nn}", O+8)):
                E(f"v_mul_f32 v{mg}, {n}, v{zr}")
                E(f"v_mul_f32 v{ph}, {n}, v{zi}")
                E(f"v_exp_f32 v{mg}, v{mg}")
                E(f"v_fract_f32 v{ph}, v{ph}")
                E(f"v_cos_f32 v{o}, v{ph}")
                E(f"v_sin_f32 v{o+1}, v{ph}")
                E(f"v_mul_f32 v{o}, v{o}, v{mg}")
                E(f"v_mul_f32 v{o+1}, v{o+1}, v{mg}")
            E(f"v_mul_f32 v{den}, v{lre}, v{lre}")
            E(f"v_fmac_f32 v{den}, v{lim}, v{lim}")
            E(f"v_rcp_f32 v{den}, v{den}")
            E(f"v_add_f32 v{mg}, -1.0, v{O}")
            E(f"v_mul_f32 v{O+6}, v{mg}, v{lre}")
            E(f"v_fmac_f32 v{O+6}, v{O+1}, v{lim}")
            E(f"v_mul_f32 v{O+7}, v{O+1}, v{lre}")
            E(f"v_fma_f32 v{O+7}, -v{mg}, v{lim}, v{O+7}")
            E(f"v_add_f32 v{den}, v{den}, v{den}")
            E(f"v_mul_f32 v{O+6}, v{O+6}, v{den}")
            E(f"v_mul_f32 v{O+7}, v{O+7}, v{den}")
            E(f"v_and_b32 v{vT[0]}, 31, v{vL}")
            E(f"v_lshlrev_b32 v{vT[2]}, 5, v{vT[0]}")
            E(f"v_add_u32 v{vT[2]}, {L_PAR}, v{vT[2]}")
            k.ds(f"ds_write_b128 v{vT[2]}, v[{O}:{O+3}]")
            k.ds(f"ds_write_b128 v{vT[2]}, v[{O+4}:{O+7}] offset:16")
            E(f"v_lshl_add_u32 v{vT[1]}, v{vT[0]}, 3, v{vT[1]}")
            E(f"v_add_u32 v{vT[1]}, {L_ASEG}, v{vT[1]}")
            k.ds(f"ds_write_b64 v{vT[1]}, v[{O+8}:{O+9}]")

        def xq(c, j): return (c*4 + j)*4
        def sum4(b):
            for d in range(4):
                E(f"v_lshlrev_b32 v{vT[0]}, 16, v{b+d}"); E(f"v_and_b32 v{vT[1]}, v{vMK}, v{b+d}")
                E(f"v_add_f32 v{vCW[0]}, v{vCW[0]}, v{vT[0]}"); E(f"v_add_f32 v{vCW[1]}, v{vCW[1]}, v{vT[1]}")
        def step_items(t):
            xs_, ws_ = sched[t]
            its = []
            for c in xs_:
                slot = c % 4
                for j in range(4):
                    its.append(dict(t=t, nb=0, rd=lambda b, j=j, c=c, slot=slot: [f"ds_read_b128 a[{xq(c,j)}:{xq(c,j)+3}], v{vXR[j]} offset:{slot*16384}"], comp=None, xread=(c, j)))
                    if isY:
                        def rd(b, j=j, slot=slot): return [f"ds_read_b128 v[{b[cc]}:{b[cc]+3}], v{vBR[j]} offset:{slot*8192 + cc*4096}" for cc in range(2)]
                        def comp(b, j=j, c=c):
                            for cc in range(2):
                                E(f"v_mfma_f32_32x32x16_bf16 v[{ACC+16*cc}:{ACC+16*cc+15}], a[{xq(c,j)}:{xq(c,j)+3}], v[{b[cc]}:{b[cc]+3}], v[{ACC+16*cc}:{ACC+16*cc+15}]")
                            if c == 0:
                                for cc in range(2):
                                    l = lab("cb")
                                    E(f"s_cmp_eq_u32 s{sRG}, {2+cc}"); E(f"s_cbranch_scc0 {l}")
                                    sum4(b[cc])
                                    E(f"{l}:")
                        its.append(dict(t=t, nb=2, rd=rd, comp=comp, need_x=(c, j), key=('u', c, j)))
            tiles = [(0, 2)] if isY else [(1, 0), (2, 2)]
            for u in ws_:
                reg, base = wloc[u]
                for ks in range(2):
                    xs, xj = u >> 1, 2*(u & 1) + ks
                    assert cons[('xb', xs)] <= t
                    for (j3, at) in tiles:
                        def rd(b, ks=ks, j3=j3, reg=reg, base=base):
                            return [f"ds_read_b64_tr_b16 v[{b[mt]+2*a}:{b[mt]+2*a+1}], v{vWR[reg]} offset:{base + mt*6144 + (16*ks+4*a)*192 + 64*j3}"
                                    for mt in range(2) for a in range(2)]
                        def comp(b, ks=ks, at=at, xs=xs, xj=xj, u=u):
                            for mt in range(2):
                                d = ACC + 16*(at+mt)
                                E(f"v_mfma_f32_32x32x16_bf16 v[{d}:{d+15}], v[{b[mt]}:{b[mt]+3}], a[{xq(xs,xj)}:{xq(xs,xj)+3}], v[{d}:{d+15}]")
                            if u < 2:
                                for mt in range(2):
                                    l = lab("cw")
                                    E(f"s_cmp_eq_u32 s{sRG}, {mt if isY else at+mt}"); E(f"s_cbranch_scc0 {l}")
                                    sum4(b[mt])
                                    E(f"{l}:")
                        its.append(dict(t=t, nb=2, rd=rd, comp=comp, need_x=(xs, xj), key=('w', u, ks, j3)))
            if not isY:
                for c in xs_:
                    if c >= 2: continue
                    for j in range(4):
                        def rd(b, j=j, c=c): return [f"ds_read_b128 v[{b[0]}:{b[0]+3}], v{vXR[j]} offset:{(c%4)*16384}"]
                        def comp(b):
                            for d in range(4):
                                E(f"v_lshlrev_b32 v{vT[0]}, 16, v{b[0]+d}"); E(f"v_and_b32 v{vT[1]}, v{vMK}, v{b[0]+d}")
                                E(f"v_add_f32 v{vS}, v{vS}, v{vT[0]}"); E(f"v_add_f32 v{vS2}, v{vS2}, v{vT[1]}")
                                E(f"v_fmac_f32 v{vQ}, v{vT[0]}, v{vT[0]}"); E(f"v_fmac_f32 v{vQ2}, v{vT[1]}, v{vT[1]}")
                        its.append(dict(t=t, nb=1, rd=rd, comp=comp, key=('s', c, j)))
            return its

        xtok = {}
        def half_add(v, tmp):
            E(f"v_mov_b32 v{tmp}, v{v}")
            E(f"v_permlane32_swap_b32 v{v}, v{tmp}")
            E(f"v_add_f32 v{v}, v{v}, v{tmp}")
        def mfrag(dst, m):
            E(f"v_xor_b32 v{dst+1}, 0x80000000, v{m}")
            E(f"v_lshrrev_b32 v{dst+1}, 16, v{dst+1}")
            E(f"v_lshl_or_b32 v{dst}, v{dst+1}, 16, v{dst+1}")
            E(f"v_mov_b32 v{dst+2}, 0"); E(f"v_mov_b32 v{dst+3}, 0")
        def csfrag(dst, c, t1):
            E(f"v_and_b32 v{t1}, v{vMK}, v{c}")
            E(f"v_sub_f32 v{c}, v{c}, v{t1}")
            E(f"v_and_b32 v{dst+1}, v{vMK}, v{c}")
            E(f"v_lshrrev_b32 v{t1}, 16, v{t1}")
            E(f"v_or_b32 v{dst}, v{dst+1}, v{t1}")
            E(f"v_sub_f32 v{c}, v{c}, v{dst+1}")
            E(f"v_lshrrev_b32 v{dst+1}, 16, v{c}")
            E(f"v_mov_b32 v{dst+2}, 0"); E(f"v_mov_b32 v{dst+3}, 0")
        def rowperm(dst, tmp):
            E(f"v_and_b32 v{dst}, 3, v{vL}")
            E(f"v_bfe_u32 v{tmp}, v{vL}, 3, 2")
            E(f"v_lshl_add_u32 v{dst}, v{tmp}, 2, v{dst}")
            E(f"v_bfe_u32 v{tmp}, v{vL}, 2, 1")
            E(f"v_lshl_add_u32 v{dst}, v{tmp}, 4, v{dst}")
        def lo32_off(dst, tmp):
            E(f"v_lshlrev_b32 v{dst}, 4, v{vL}")
            E(f"v_mov_b32 v{tmp}, {OOB}")
            E(f"v_cmp_gt_u32 vcc, 32, v{vL}")
            E(f"v_cndmask_b32 v{dst}, v{tmp}, v{dst}, vcc")
        vM, vRS = vS, vQ
        tok = {}
        pr, pi_ = 1, 8; ar, ai, a16r, a16i, a128r, a128i, c2r, c2i = 2, 3, 4, 5, 6, 7, 12, 13
        SGA = 0; CBA = 8
        CWA = 8
        GRA = 32
        ntile = 2 if isY else 4

        def publish_partials():
            E(f"v_add_f32 v{vCW[0]}, v{vCW[0]}, v{vCW[1]}")
            half_add(vCW[0], vCW[1])
            E(f"v_mov_b32 v{vCW[1]}, s{sTAG}")
            if isY:
                E(f"s_add_u32 s{sT1}, s{sRG}, 4"); E(f"s_cmp_lt_u32 s{sRG}, 2"); E(f"s_cselect_b32 s{sT0}, s{sRG}, s{sT1}")
            else:
                E(f"s_add_u32 s{sT0}, s{sRG}, 2")
            E(f"s_lshl_b32 s{sT0}, s{sT0}, 11")
            E(f"s_bfe_u32 s{sT1}, s{sROT}, 0x10001"); E(f"s_lshl_b32 s{sT1}, s{sT1}, 10"); E(f"s_add_u32 s{sT0}, s{sT0}, s{sT1}")
            E(f"s_lshr_b32 s{sT1}, s{sROT}, 2"); E(f"s_lshl_b32 s{sT1}, s{sT1}, 9"); E(f"s_add_u32 s{sT0}, s{sT0}, s{sT1}")
            E(f"s_and_b32 s{sT1}, s{sROT}, 1"); E(f"s_lshl_b32 s{sT1}, s{sT1}, 3"); E(f"s_add_u32 s{sT0}, s{sT0}, s{sT1}")
            E(f"s_add_u32 s{sT0}, s{sT0}, s{sCWB}")
            lo32_off(vT[0], vT[1])
            k.vm(f"buffer_store_dwordx2 v[{vCW[0]}:{vCW[0]+1}], v{vT[0]}, s[{sWS}:{sWS+3}], s{sT0} offen {SC}")
            if not isY:
                E(f"v_add_f32 v{vS}, v{vS}, v{vS2}"); E(f"v_add_f32 v{vS2}, v{vQ}, v{vQ2}")
                half_add(vS, vT[1]); half_add(vS2, vT[2])
                E(f"v_mov_b32 v{vQ}, s{sTAG}"); E(f"v_mov_b32 v{vQ2}, s{sTAG}")
                E(f"s_and_b32 s{sT0}, s{sCS}, 1"); E(f"s_lshl_b32 s{sT0}, s{sT0}, 10")
                E(f"s_bfe_u32 s{sT1}, s{sCS}, 0x10001"); E(f"s_lshl_b32 s{sT1}, s{sT1}, 9")
                E(f"s_add_u32 s{sT0}, s{sT0}, s{sT1}"); E(f"s_add_u32 s{sT0}, s{sT0}, s{sSGB}")
                k.vm(f"buffer_store_dwordx4 v[{vS}:{vS+3}], v{vT[0]}, s[{sWS}:{sWS+3}], s{sT0} offen {SC}")
            E("; MK pub")
        def vmx(s, track, key):
            if track: tok[key] = k.vm(s)
            else: E(s)
        def load_sg(track=True):
            E(f"v_lshlrev_b32 v{vT[0]}, 4, v{vL}")
            for i in range(2):
                vmx(f"buffer_load_dwordx4 a[{SGA+4*i}:{SGA+4*i+3}], v{vT[0]}, s[{sWS}:{sWS+3}], s{sSGB} offen offset:{i*1024} {SC}", track, 'sg')
        def load_cw(tile0, n, areg, key, track=True):
            E(f"v_lshlrev_b32 v{vT[0]}, 4, v{vL}")
            E(f"s_add_u32 s{sT0}, s{sCWB}, {tile0*2048}")
            E(f"s_add_u32 s{sT1}, s{sT0}, 4096")
            for i in range(2*n):
                vmx(f"buffer_load_dwordx4 a[{areg+4*i}:{areg+4*i+3}], v{vT[0]}, s[{sWS}:{sWS+3}], s{sT0 if i < 4 else sT1} offen offset:{(i%4)*1024} {SC}", track, key)
        def load_gr(track=True):
            E(f"v_and_b32 v{vT[0]}, 31, v{vL}")
            E(f"v_lshlrev_b32 v{vT[2]}, 4, v{vT[0]}")
            E(f"s_lshl_b32 s{sT0}, s{sCS}, 13"); E(f"s_add_u32 s{sT0}, s{sT0}, {GR_OFF}")
            E(f"s_add_u32 s{sT1}, s{sT0}, 4096")
            for rbp in range(15):
                vmx(f"buffer_load_dwordx4 a[{GRA+4*rbp}:{GRA+4*rbp+3}], v{vT[2]}, s[{sWS}:{sWS+3}], s{sT0 if rbp < 8 else sT1} offen offset:{(rbp%8)*512} {SC}", track, 'gr')
        def get8(q, areg, bad):
            for i in range(8): E(f"v_accvgpr_read_b32 v{q+i}, a{areg+i}")
            for i in (1, 3, 5, 7): E(f"v_xor_b32 v{q+i}, s{sTAG}, v{q+i}")
            E(f"v_or3_b32 v{bad}, v{bad}, v{q+1}, v{q+3}"); E(f"v_or3_b32 v{bad}, v{bad}, v{q+5}, v{q+7}")
        def retry(lbl, bad, reload):
            E(f"v_cmp_ne_u32 vcc, 0, v{bad}")
            E("s_nop 1")
            E("s_cmp_eq_u64 vcc, 0")
            E(f"s_cbranch_scc1 {lbl}_OK")
            reload()
            E("s_waitcnt vmcnt(0)")
            E(f"s_branch {lbl}")
            E(f"{lbl}_OK:")
        def stats_from(q, m, rs, t1, t2):
            E(f"v_add_f32 v{m}, v{q}, v{q+4}"); E(f"v_add_f32 v{t1}, v{q+2}, v{q+6}")
            half_add(m, t2); half_add(t1, rs)
            E(f"v_mul_f32 v{m}, 0x3b000000, v{m}")
            E(f"v_mul_f32 v{t1}, 0x3b000000, v{t1}")
            E(f"v_fma_f32 v{t1}, -v{m}, v{m}, v{t1}")
            E(f"v_max_f32 v{t1}, 0, v{t1}")
            round1(m); round1(t1)
            E(f"v_add_f32 v{t1}, 0x3727c5ac, v{t1}")
            round1(t1)
            E(f"v_sqrt_f32 v{t1}, v{t1}")
            round1(t1)
            E(f"v_rcp_f32 v{rs}, v{t1}")
            E(f"v_fma_f32 v{t2}, -v{t1}, v{rs}, 1.0")
            E(f"v_fmac_f32 v{rs}, v{t2}, v{rs}")

        def u_epilogue():
            E("; MK uep")
            qs = take(8); R = FB; Rr = FB + 16; Q = FB + 16
            E(f"v_and_b32 v{vT[0]}, 31, v{vL}")
            E(f"v_lshlrev_b32 v{vT[2]}, 5, v{vT[0]}")
            E(f"v_add_u32 v{vT[2]}, {L_PAR}, v{vT[2]}")
            k.ds(f"ds_read_b128 v[2:5], v{vT[2]}")
            k.ds(f"ds_read_b64 v[6:7], v{vT[2]} offset:16")
            k.ds(f"ds_read_b64 v[12:13], v{vT[2]} offset:24")
            rowperm(vT[1], vT[2])
            E(f"s_lshl_b32 s{sT2}, s{sRG}, 7"); E(f"s_add_u32 s{sT2}, s{sT2}, {L_RST}")
            E(f"v_lshl_add_u32 v{vT[1]}, v{vT[1]}, 2, s{sT2}")
            k.wait(vm=tok['cb'])
            E("F_UG:")
            E(f"v_mov_b32 v{vT[4]}, 0")
            get8(Q, SGA, vT[4])
            stats_from(Q, vM, vRS, R+12, R+13)
            E(f"ds_write_b32 v{vT[1]}, v{vRS}")
            for c in range(2):
                get8(Q, CBA + 8*c, vT[4])
                E(f"v_add_f32 v{Q}, v{Q}, v{Q+2}"); E(f"v_add_f32 v{Q+4}, v{Q+4}, v{Q+6}"); E(f"v_add_f32 v{Q}, v{Q}, v{Q+4}")
                csfrag(R+4+4*c, Q, vT[2])
            retry("F_UG", vT[4], lambda: (load_sg(False), load_cw(6, 2, CBA, 'cb', False)))
            k.nds += 1
            E(f"v_lshrrev_b32 v{vT[2]}, 5, v{vL}")
            E(f"v_lshl_add_u32 v{vT[1]}, v{vT[2]}, 6, s{sT2}")
            for i in range(4): k.ds(f"ds_read_b128 v[{Rr+4*i}:{Rr+4*i+3}], v{vT[1]} offset:{16*i}")
            mfrag(R, vM)
            for c in range(2):
                E(f"v_mfma_f32_32x32x16_bf16 v[{ACC+16*c}:{ACC+16*c+15}], v[{R}:{R+3}], v[{R+4+4*c}:{R+7+4*c}], v[{ACC+16*c}:{ACC+16*c+15}]")
            E(f"v_and_b32 v{vT[0]}, 31, v{vL}")
            E(f"s_lshl_b32 s{sT0}, s{sRG}, 9"); E(f"s_add_u32 s{sT0}, s{sT0}, {L_SEG}")
            E(f"v_lshl_add_u32 v{vT[1]}, v{vT[2]}, 8, s{sT0}")
            E(f"v_lshl_add_u32 v{vT[1]}, v{vT[0]}, 3, v{vT[1]}")
            E(f"s_lshl_b32 s{sT0}, s{sRG}, 1")
            E(f"v_add_u32 v{vT[2]}, s{sT0}, v{vT[2]}")
            E(f"s_lshl_b32 s{sT0}, s{sRG}, 2"); E(f"s_add_u32 s{sT0}, s{sT0}, {L_FLG}")
            E(f"v_mov_b32 v{vT[3]}, s{sT0}"); E(f"v_mov_b32 v{vT[4]}, 1")
            k.wait_all_ds()
            for v in range(16): E(f"v_mul_f32 v{ACC+v}, v{ACC+v}, v{Rr+v}")
            for v in range(16): E(f"v_mul_f32 v{ACC+16+v}, v{ACC+16+v}, v{Rr+v}")
            er, ei = ACC, ACC+16
            for v in range(1, 16):
                d = R if v % 2 else R+2
                E(f"v_fma_f32 v{d}, v{ar}, v{er}, v{ACC+v}")
                E(f"v_fma_f32 v{d+1}, v{ar}, v{ei}, v{ACC+16+v}")
                E(f"v_fma_f32 v{d}, -v{ai}, v{ei}, v{d}")
                E(f"v_fmac_f32 v{d+1}, v{ai}, v{er}")
                er, ei = d, d+1
            k.ds(f"ds_write_b64 v{vT[1]}, v[{R}:{R+1}]")
            k.ds(f"ds_write_b32 v{vT[3]}, v{vT[4]}")
            E(f"v_mov_b32 v{vT[3]}, {L_FLG}")
            E(f"v_lshlrev_b32 v{vT[1]}, 3, v{vT[0]}")
            E(f"v_add_u32 v{vT[1]}, {L_SEG}, v{vT[1]}")
            E(f"v_mov_b32 v{pr}, 0"); E(f"v_mov_b32 v{pi_}, 0")
            k.wait_all_ds()
            E("F_YSYNC:")
            E(f"ds_read_b128 v[{R+4}:{R+7}], v{vT[3]}")
            for s in range(8): E(f"ds_read_b64 v[{Rr+2*s}:{Rr+2*s+1}], v{vT[1]} offset:{s*256}")
            E("s_waitcnt lgkmcnt(8)")
            E(f"v_and_b32 v{R+4}, v{R+4}, v{R+5}"); E(f"v_and_b32 v{R+6}, v{R+6}, v{R+7}"); E(f"v_and_b32 v{R+4}, v{R+4}, v{R+6}")
            E(f"v_readfirstlane_b32 s{sT0}, v{R+4}")
            E("s_waitcnt lgkmcnt(0)")
            E(f"s_cmp_eq_u32 s{sT0}, 1")
            E("s_cbranch_scc0 F_YSYNC")
            lo32_off(vT[1], vT[3])
            E(f"s_lshl_b32 s{sT0}, s{sCS}, 4"); E(f"s_add_u32 s{sT0}, s{sT0}, s{sRB}"); E(f"s_lshl_b32 s{sT0}, s{sT0}, 9")
            E(f"s_add_u32 s{sT0}, s{sT0}, {GR_OFF}")
            E(f"s_cmp_eq_u32 s{sRG}, 0")
            E(f"s_cselect_b32 s{sT0}, s{sT0}, {OOB}")
            E(f"v_mov_b32 v{R+1}, s{sTAG}"); E(f"v_mov_b32 v{R+3}, s{sTAG}")
            cr, ci = Rr, Rr+1
            for s in range(1, 8):
                nr, ni = Rr+2*s, Rr+2*s+1
                E(f"v_fmac_f32 v{nr}, v{a16r}, v{cr}")
                E(f"v_fmac_f32 v{ni}, v{a16r}, v{ci}")
                E(f"v_fma_f32 v{nr}, -v{a16i}, v{ci}, v{nr}")
                E(f"v_fmac_f32 v{ni}, v{a16i}, v{cr}")
                cr, ci = nr, ni
            E(f"v_mov_b32 v{R}, v{cr}"); E(f"v_mov_b32 v{R+2}, v{ci}")
            k.vm(f"buffer_store_dwordx4 v[{R}:{R+3}], v{vT[1]}, s[{sWS}:{sWS+3}], s{sT0} offen {SC}")
            E("; MK grpub")
            for s in range(1, 8):
                E(f"v_cmp_eq_u32 vcc, {s}, v{vT[2]}")
                E(f"v_cndmask_b32 v{pr}, v{pr}, v{Rr+2*(s-1)}, vcc")
                E(f"v_cndmask_b32 v{pi_}, v{pi_}, v{Rr+2*(s-1)+1}, vcc")
            free.extend(qs)

        def flag_store(kind):
            E(f"s_lshl_b32 s{sT0}, s{sRB}, 2"); E(f"s_add_u32 s{sT0}, s{sT0}, s{sRG}"); E(f"s_lshl_b32 s{sT0}, s{sT0}, 8")
            E(f"s_lshl_b32 s{sT1}, s{sCS}, 2"); E(f"s_add_u32 s{sT0}, s{sT0}, s{sT1}"); E(f"s_add_u32 s{sT0}, s{sT0}, {FL_OFF + kind*64}")
            E(f"v_mov_b32 v{vT[3]}, {OOB}")
            E(f"v_cmp_eq_u32 vcc, 0, v{vL}")
            E(f"v_mov_b32 v{vT[4]}, s{sTAG}")
            E(f"v_cndmask_b32 v{vT[3]}, v{vT[3]}, 0, vcc")
            k.vm(f"buffer_store_dword v{vT[4]}, v{vT[3]}, s[{sWS}:{sWS+3}], s{sT0} offen {SC}")

        def lookback():
            qs = take(8)
            gr, gi = vS2, vQ2
            asr, asi = vCW
            E(f"v_and_b32 v{vT[0]}, 31, v{vL}")
            E(f"v_lshrrev_b32 v{vT[3]}, 5, v{vL}")
            E(f"s_lshl_b32 s{sT2}, s{sRG}, 9"); E(f"s_add_u32 s{sT2}, s{sT2}, {L_ASEG}")
            E(f"v_lshl_add_u32 v{vT[3]}, v{vT[3]}, 8, s{sT2}")
            E(f"v_lshl_add_u32 v{vT[3]}, v{vT[0]}, 3, v{vT[3]}")
            tka = k.ds(f"ds_read_b64 v[{asr}:{asr+1}], v{vT[3]}")
            E("; MK lb0")
            k.wait(vm=tok['gr'], ds=tka)
            E("F_POLL:")
            E(f"v_mov_b32 v{gr}, 0"); E(f"v_mov_b32 v{gi}, 0"); E(f"v_mov_b32 v{vT[4]}, 0")
            for rbp in range(15):
                E(f"s_cmp_le_u32 s{sRB}, {rbp}"); E("s_cbranch_scc1 F_POLL_C")
                q = FB + 4*(rbp % 2)
                for i in range(4): E(f"v_accvgpr_read_b32 v{q+i}, a{GRA+4*rbp+i}")
                E(f"v_xor_b32 v{q+1}, s{sTAG}, v{q+1}"); E(f"v_xor_b32 v{q+3}, s{sTAG}, v{q+3}")
                E(f"v_fmac_f32 v{q}, v{a128r}, v{gr}"); E(f"v_fmac_f32 v{q+2}, v{a128r}, v{gi}")
                E(f"v_or3_b32 v{vT[4]}, v{vT[4]}, v{q+1}, v{q+3}")
                E(f"v_fma_f32 v{q}, -v{a128i}, v{gi}, v{q}"); E(f"v_fma_f32 v{gi}, v{a128i}, v{gr}, v{q+2}")
                E(f"v_mov_b32 v{gr}, v{q}")
            E("F_POLL_C:")
            retry("F_POLL", vT[4], lambda: load_gr(False))
            E("; MK lbok")
            E(f"v_fmac_f32 v{pr}, v{asr}, v{gr}"); E(f"v_fmac_f32 v{pi_}, v{asr}, v{gi}")
            E(f"v_fma_f32 v{pr}, -v{asi}, v{gi}, v{pr}"); E(f"v_fmac_f32 v{pi_}, v{asi}, v{gr}")
            E(f"v_and_b32 v{vT[0]}, 31, v{vL}")
            E(f"v_lshrrev_b32 v{vT[3]}, 5, v{vL}")
            E(f"v_mul_u32_u24 v{vT[3]}, 1280, v{vT[3]}")
            E(f"s_mul_i32 s{sT2}, s{sRG}, 5120"); E(f"s_add_u32 s{sT2}, s{sT2}, {L_HT}")
            E(f"v_lshl_add_u32 v{vT[3]}, v{vT[0]}, 1, v{vT[3]}")
            E(f"v_add_u32 v{vT[3]}, s{sT2}, v{vT[3]}")
            hr, hi = pr, pi_
            for v in range(16):
                ur, ui = ACC+v, ACC+16+v
                o1, o2 = FB + 2*(v%4), FB + 2*(v%4) + 1
                E(f"v_fmac_f32 v{ur}, v{ar}, v{hr}"); E(f"v_fmac_f32 v{ui}, v{ar}, v{hi}")
                E(f"v_fma_f32 v{ur}, -v{ai}, v{hi}, v{ur}"); E(f"v_fmac_f32 v{ui}, v{ai}, v{hr}")
                hr, hi = ur, ui
                E(f"v_mul_f32 v{o1}, v{c2r}, v{hr}"); E(f"v_mul_f32 v{o2}, v{c2r}, v{hi}")
                E(f"v_fma_f32 v{o1}, -v{c2i}, v{hi}, v{o1}"); E(f"v_fmac_f32 v{o2}, v{c2i}, v{hr}")
                pk = FB + 8 + v
                E(f"v_cvt_pk_bf16_f32 v{pk}, v{o1}, -v{o2}")
                k.ds(f"ds_write_b16 v{vT[3]}, v{pk} offset:{v*80}")
                k.ds(f"ds_write_b16_d16_hi v{vT[3]}, v{pk} offset:{2560 + v*80}")
            rowperm(vT[0], vT[2])
            E(f"v_mul_u32_u24 v{vT[0]}, 80, v{vT[0]}")
            E(f"v_lshrrev_b32 v{vT[2]}, 5, v{vL}")
            E(f"v_lshl_add_u32 v{vT[0]}, v{vT[2]}, 4, v{vT[0]}")
            E(f"v_add_u32 v{vT[0]}, s{sT2}, v{vT[0]}")
            E(f"v_lshlrev_b32 v{vT[1]}, 4, v{vL}")
            E(f"s_lshl_b32 s{sT0}, s{sRB}, 2"); E(f"s_add_u32 s{sT0}, s{sT0}, s{sRG}"); E(f"s_lshl_b32 s{sT0}, s{sT0}, 16")
            E(f"s_lshl_b32 s{sT1}, s{sCS}, 11"); E(f"s_add_u32 s{sT0}, s{sT0}, s{sT1}"); E(f"s_add_u32 s{sT0}, s{sT0}, {HS_OFF}")
            E(f"s_add_u32 s{sT1}, s{sT0}, 32768")
            O = ACC
            for c in range(2):
                for s in range(2):
                    k.ds(f"ds_read_b128 v[{O+8*c+4*s}:{O+8*c+4*s+3}], v{vT[0]} offset:{c*2560 + 32*s}")
            k.wait_all_ds()
            for c in range(2):
                for s in range(2):
                    tok['hs'] = k.vm(f"buffer_store_dwordx4 v[{O+8*c+4*s}:{O+8*c+4*s+3}], v{vT[1]}, s[{sWS}:{sWS+3}], s{sT0 if c==0 else sT1} offen offset:{s*1024} {SC}")
            E("; MK lbend")
            free.extend(qs)

        items = []
        for t in range(NS): items += step_items(t)
        idx = {it['key']: i for i, it in enumerate(items) if 'key' in it}
        comps = [i for i, it in enumerate(items) if it['comp'] is not None]
        j3f = 0 if isY else 1
        def first_w(u): return idx[('w', u, 0, j3f)]
        def after(i):
            return min(c for c in comps if c > i)
        ev = {}
        fev = {}
        last01 = max(i for i in comps if items[i]['t'] <= 1)
        preb = {2: publish_partials}
        if isY:
            ev.setdefault(idx[('u', 6, 0)], []).append(lambda: (load_sg(), load_cw(6, 2, CBA, 'cb')))
            assert idx[('w', 3, 1, 0)] < idx[('u', 6, 0)]
            fev[after(idx[('u', 7, 3)])] = u_epilogue
            ev.setdefault(first_w(gr_at), []).append(lambda: (load_gr(), load_cw(0, 2, CWA, 'cw')))
            fev[first_w(lb_at)] = lookback
        else:
            fz = min(i for i in comps if items[i]['t'] > last_issue)
            assert fz >= first_w(6)
            ev.setdefault(fz, []).append(lambda: (load_sg(), load_cw(2, 4, CWA, 'cw')))
        nr = 0; cur = -1; pend = []
        def issue_reads():
            nonlocal nr
            stop = min(fev) if fev else len(items)
            while nr < stop and items[nr]['t'] <= cur and items[nr]['nb'] <= len(free):
                it = items[nr]
                it['b'] = [free.pop(0) for _ in range(it['nb'])]
                for s in it['rd'](it['b']): it['tok'] = k.ds(s)
                if 'xread' in it: xtok[it['xread']] = it['tok']
                nr += 1
        def do_barrier():
            nonlocal cur, pend
            t = cur + 1
            for op in pend: op()
            pend = []
            need = [unit_tok[un] for un in order if cons[un] == t and un in unit_tok]
            if need: k.wait(vm=max(need))
            k.wait_all_ds()
            E("s_barrier")
            cur = t
            E(f"; MK b{t}")
            pend = ops_at(t)
        ci = 0
        while ci < len(comps) or cur < NS - 1:
            issue_reads()
            allread = (nr >= len(items)) or items[nr]['t'] > cur
            rem = sum(1 for c in comps[ci:] if items[c]['t'] <= cur)
            if cur < NS - 1 and allread and rem <= (0 if (cur + 1) in preb else defer):
                if (cur + 1) in preb: preb[cur + 1]()
                do_barrier(); continue
            if comps[ci] in fev:
                fev.pop(comps[ci])(); continue
            it = items[comps[ci]]
            for f in ev.pop(comps[ci], []): f()
            rem_cur = max(1, rem - defer)
            n = -(-len(pend) // rem_cur)
            for _ in range(n):
                if pend: pend.pop(0)()
            tk = it['tok']
            if 'need_x' in it: tk = max(tk, xtok[it['need_x']])
            k.wait(ds=tk)
            it['comp'](it['b'])
            free.extend(it['b'])
            ci += 1
        assert not pend and not ev and not fev
        k.wait_all_ds()
        E("; MK lastm")
        E("s_barrier")
        E("; MK fin")
        R = FB; MF = R + 16; Q = R + 20
        E(f"s_lshl_b32 s{sT2}, s{sRB}, 2"); E(f"s_add_u32 s{sT2}, s{sT2}, s{sRG}"); E(f"s_mul_i32 s{sT3}, s{sT2}, 86")
        E(f"s_lshl_b32 s{sT2}, s{sFT0}, 1"); E(f"s_add_u32 s{sT3}, s{sT3}, s{sT2}"); E(f"s_lshl_b32 s{sT3}, s{sT3}, 10")
        if HH_OFF: E(f"s_add_u32 s{sT3}, s{sT3}, {HH_OFF}")
        k.wait(vm=tok['cw'])
        E(f"F_CW{tl}:")
        E(f"v_mov_b32 v{vT[4]}, 0")
        if not isY:
            get8(Q, SGA, vT[4])
            stats_from(Q, vM, vRS, R+28, R+29)
        for a in range(ntile):
            get8(Q, CWA + 8*a, vT[4])
            E(f"v_add_f32 v{Q}, v{Q}, v{Q+2}"); E(f"v_add_f32 v{Q+4}, v{Q+4}, v{Q+6}"); E(f"v_add_f32 v{Q}, v{Q}, v{Q+4}")
            csfrag(R + 4*a, Q, vT[0])
        retry(f"F_CW{tl}", vT[4], (lambda: load_cw(0, 2, CWA, 'cw', False)) if isY else (lambda: (load_sg(False), load_cw(2, 4, CWA, 'cw', False))))
        E("; MK cwok")
        mfrag(MF, vM)
        for a in range(ntile):
            d = ACC + 16*(a + (2 if isY else 0))
            E(f"v_mfma_f32_32x32x16_bf16 v[{d}:{d+15}], v[{R+4*a}:{R+4*a+3}], v[{MF}:{MF+3}], v[{d}:{d+15}]")
        if not isY:
            rowperm(vT[0], vT[1])
            E(f"v_lshlrev_b32 v{vT[0]}, 3, v{vT[0]}")
            E(f"s_lshr_b32 s{sT0}, s{sXB}, 7")
            E(f"s_add_u32 s{sT0}, s{sT0}, {ST_OFF}")
            E(f"s_cmp_eq_u32 s{sCS}, 0")
            E(f"s_cselect_b32 s{sT0}, s{sT0}, {OOB}")
            k.vm(f"buffer_store_dwordx2 v[{vM}:{vM+1}], v{vT[0]}, s[{sWS}:{sWS+3}], s{sT0} offen {SC}")
        else:
            k.wait(vm=tok['hs'])
            flag_store(2)
        E(f"v_mul_f32 v{vS2}, v{vRS}, v{vRS}")
        E(f"v_lshlrev_b32 v{vT[1]}, 4, v{vL}")
        tiles = [(0, 2)] if isY else [(1, 0), (2, 2)]
        for (j3, at) in tiles:
            G, U = ACC + 16*at, ACC + 16*(at+1)
            for v in range(16): E(f"v_max_f32 v{G+v}, 0, v{G+v}")
            for v in range(16): E(f"v_mul_f32 v{U+v}, v{vS2}, v{U+v}")
            for v in range(16): E(f"v_mul_f32 v{G+v}, v{G+v}, v{U+v}")
            for v in range(0, 16, 2): E(f"v_cvt_pk_bf16_f32 v{U+v//2}, v{G+v}, v{G+v+1}")
            E(f"s_add_u32 s{sT2}, s{sT3}, {j3*2048}")
            if j3 == 2: E(f"s_add_u32 s{sT2}, s{sT2}, s{sT3OFF}")
            for s in range(2):
                tok['hh'] = k.vm(f"buffer_store_dwordx4 v[{U+4*s}:{U+4*s+3}], v{vT[1]}, s[{sWS}:{sWS+3}], s{sT2} offen offset:{s*1024} {SC}")
        E("; MK hh")

        is_g3 = not isY
        sRT, sCB, sAB, sBB2, sM0B = sXB, sBB, sWB, sFT0, sMX
        sB2, sO, sD = sBm, sWm, sP0
        vL16 = 1; vDMA0, vDMA1 = 2, 3; vRD = [4, 5, 6, 7]
        XV = 8; vDS, vOUT, vST, vFL = 16, 17, 18, 19
        AR = 20
        ring = [32, 40, 48, 56]
        E(f"s_and_b32 s{sT0}, s2, 7"); E(f"s_lshr_b32 s{sT1}, s2, 3")
        E(f"s_and_b32 s{sT2}, s{sT1}, 3")
        E(f"s_lshl_b32 s{sRT}, s{sT0}, 2"); E(f"s_add_u32 s{sRT}, s{sRT}, s{sT2}")
        E(f"s_lshr_b32 s{sCB}, s{sT1}, 2")
        E(f"s_lshl_b32 s{sM0B}, s{sW}, 14")
        E(f"v_lshlrev_b32 v{vL16}, 4, v{vL}")
        t0, t1, t2, t3, t4 = vT
        E(f"v_lshrrev_b32 v{t2}, 3, v{vL}"); E(f"v_and_b32 v{t3}, 7, v{vL}"); E(f"v_lshrrev_b32 v{t4}, 5, v{vL}")
        if is_g3:
            nun, ks, nslot = 11, 2, 4
            E(f"s_mov_b32 s{sB2}, s24"); E(f"s_mov_b32 s{sB2+1}, s25"); E(f"s_mov_b32 s{sB2+2}, {1376*1024}")
            E(f"v_bfe_u32 v{t0}, v{t2}, 1, 1"); E(f"v_lshlrev_b32 v{t0}, 2, v{t0}"); E(f"v_xor_b32 v{t0}, v{t0}, v{t3}")
            E(f"v_lshlrev_b32 v{t0}, 4, v{t0}"); E(f"v_lshl_add_u32 v{vDMA0}, v{t2}, 10, v{t0}")
            E(f"s_mul_i32 s{sBB2}, s{sRG}, {11*32*1024}"); E(f"s_lshl_b32 s{sT0}, s{sCB}, 7"); E(f"s_add_u32 s{sBB2}, s{sBB2}, s{sT0}")
            ustep = 32768
        else:
            nun, ks, nslot = 4, 4, 2
            E(f"s_cmp_lt_u32 s{sRG}, 2")
            E(f"s_cselect_b32 s{sB2}, s4, s6"); E(f"s_cselect_b32 s{sB2+1}, s5, s7"); E(f"s_mov_b32 s{sB2+2}, {512*1024}")
            E(f"v_lshrrev_b32 v{t0}, 1, v{t2}"); E(f"v_xor_b32 v{t0}, v{t0}, v{t3}"); E(f"v_lshlrev_b32 v{t0}, 4, v{t0}")
            E(f"v_lshl_add_u32 v{vDMA0}, v{t2}, 10, v{t0}"); E(f"v_xor_b32 v{vDMA1}, 64, v{vDMA0}")
            E(f"s_lshl_b32 s{sBB2}, s{sCB}, 16"); E(f"s_and_b32 s{sT0}, s{sRG}, 1"); E(f"s_lshl_b32 s{sT0}, s{sT0}, 9"); E(f"s_add_u32 s{sBB2}, s{sBB2}, s{sT0}")
            ustep = 128
        slotB = 2048 * ks
        btok = {}
        def b_issue(n):
            slot = n % nslot
            for i in range(2*ks):
                E(f"s_add_u32 m0, s{sM0B}, {slot*slotB + i*1024}")
                E(f"s_add_u32 s{sI0}, s{sBB2}, {n*ustep + i*8192}")
                va = vDMA0 if (is_g3 or i % 2 == 0) else vDMA1
                btok[n] = k.vm(f"buffer_load_dwordx4 v{va}, s[{sB2}:{sB2+3}], s{sI0} offen lds")
        for n in range(nslot): b_issue(n)
        if is_g3:
            E(f"v_bfe_u32 v{t0}, v{vL}, 2, 2"); E(f"v_lshl_add_u32 v{t0}, v{t4}, 2, v{t0}"); E(f"v_lshlrev_b32 v{t0}, 7, v{t0}")
            E(f"v_bfe_u32 v{t1}, v{vL}, 3, 1"); E(f"v_lshl_add_u32 v{t0}, v{t1}, 6, v{t0}")
            E(f"v_bfe_u32 v{t1}, v{vL}, 4, 1"); E(f"v_lshl_add_u32 v{t0}, v{t1}, 5, v{t0}")
            E(f"v_and_b32 v{t1}, 3, v{vL}"); E(f"v_lshl_add_u32 v{t0}, v{t1}, 3, v{t0}")
            E(f"v_add_u32 v{vRD[0]}, s{sM0B}, v{t0}"); E(f"v_xor_b32 v{vRD[1]}, 64, v{vRD[0]}")
            E(f"s_mul_i32 s{sAB}, s{sRT}, 172"); E(f"s_mul_i32 s{sT0}, s{sRG}, 22"); E(f"s_add_u32 s{sAB}, s{sAB}, s{sT0}")
            E(f"s_lshl_b32 s{sAB}, s{sAB}, 10")
            if HH_OFF: E(f"s_add_u32 s{sAB}, s{sAB}, {HH_OFF}")
            ltA = 86*1024
        else:
            E(f"v_and_b32 v{t0}, 31, v{vL}"); E(f"v_bfe_u32 v{t1}, v{vL}, 1, 3"); E(f"v_xor_b32 v{t1}, v{t1}, v{t4}")
            E(f"v_lshlrev_b32 v{t1}, 4, v{t1}"); E(f"v_lshl_add_u32 v{t0}, v{t0}, 7, v{t1}")
            E(f"v_add_u32 v{vRD[0]}, s{sM0B}, v{t0}")
            for j in range(1, 4): E(f"v_xor_b32 v{vRD[j]}, {j<<5}, v{vRD[0]}")
            E(f"s_lshl_b32 s{sAB}, s{sRT}, 17"); E(f"s_lshl_b32 s{sT0}, s{sRG}, 14"); E(f"s_add_u32 s{sAB}, s{sAB}, s{sT0}")
            E(f"s_add_u32 s{sAB}, s{sAB}, {HS_OFF}")
            ltA = 65536
        srd(sO, 26, 4194304); srd(sD, 96, 1024)
        k.wait(vm=tok['hh'])
        flag_store(0 if isY else 1)
        E("; MK flst")
        for i in range(64): E(f"v_mov_b32 v{ACC+i}, 0")
        def b_read(n, abase):
            slot = n % nslot
            for j in range(ks):
                for ct in range(2):
                    b = abase + j*8 + ct*4
                    if is_g3:
                        for a in range(2):
                            tk = k.ds(f"ds_read_b64_tr_b16 a[{b+2*a}:{b+2*a+1}], v{vRD[ct]} offset:{slot*slotB + (16*j+8*a)*128}")
                    else:
                        tk = k.ds(f"ds_read_b128 a[{b}:{b+3}], v{vRD[j]} offset:{slot*slotB + ct*4096}")
            return tk
        npre = 8 if is_g3 else 4
        for n in range(npre):
            k.wait(vm=btok[n])
            tk = b_read(n, n*ks*8)
            if n + nslot < nun:
                k.wait(ds=tk)
                b_issue(n + nslot)
        E(f"v_and_b32 v{t0}, 31, v{vL}")
        E(f"s_lshl_b32 s{sT0}, s{sRT}, 6")
        E(f"s_lshr_b32 s{sT1}, s{sW}, 2"); E(f"s_lshl_b32 s{sT1}, s{sT1}, 5"); E(f"s_add_u32 s{sT0}, s{sT0}, s{sT1}")
        E(f"s_and_b32 s{sT1}, s{sW}, 1"); E(f"s_lshl_b32 s{sT1}, s{sT1}, 3"); E(f"s_add_u32 s{sT0}, s{sT0}, s{sT1}")
        E(f"s_lshl_b32 s{sT1}, s{sCB}, 6")
        E(f"s_bfe_u32 s{sT2}, s{sW}, 0x10001"); E(f"s_lshl_b32 s{sT2}, s{sT2}, 5"); E(f"s_add_u32 s{sT1}, s{sT1}, s{sT2}")
        E(f"v_lshrrev_b32 v{t4}, 5, v{vL}")
        E(f"v_lshl_add_u32 v{t1}, v{t4}, 4, s{sT0}")
        E(f"v_add_u32 v{t2}, s{sT1}, v{t0}")
        E(f"v_lshl_add_u32 v{t3}, v{t1}, 9, v{t2}")
        E(f"v_lshlrev_b32 v{vOUT}, 2, v{t3}")
        E(f"v_lshlrev_b32 v{t3}, 1, v{t3}")
        for e in range(4): k.vm(f"buffer_load_ushort v{XV+e}, v{t3}, s[{sX}:{sX+3}], 0 offen offset:{e*1024}")
        E(f"s_movk_i32 s{sT2}, 0x1000")
        for e in range(4, 8): k.vm(f"buffer_load_ushort v{XV+e}, v{t3}, s[{sX}:{sX+3}], s{sT2} offen offset:{(e-4)*1024}")
        E(f"v_lshlrev_b32 v{t2}, 1, v{t2}")
        k.vm(f"buffer_load_ushort v{vDS}, v{t2}, s[{sD}:{sD+3}], 0 offen")
        E(f"v_lshlrev_b32 v{vST}, 3, v{t1}")
        E(f"v_and_b32 v{t0}, 15, v{vL}"); E(f"v_bfe_u32 v{t1}, v{vL}, 4, 1")
        E(f"v_lshlrev_b32 v{t0}, 2, v{t0}"); E(f"v_lshl_add_u32 v{t0}, v{t1}, 8, v{t0}")
        if is_g3: E(f"v_lshl_add_u32 v{vFL}, v{t4}, 6, v{t0}")
        else:
            E(f"v_lshlrev_b32 v{t1}, 6, v{t4}"); E(f"v_sub_u32 v{t1}, 128, v{t1}"); E(f"v_add_u32 v{vFL}, v{t0}, v{t1}")
        E(f"s_lshl_b32 s{sT3}, s{sRT}, 9"); E(f"s_add_u32 s{sT3}, s{sT3}, {FL_OFF}")
        E("; MK bpre")
        E(f"RESET_p{tl}:")
        E(f"F_FP{tl}:")
        E(f"buffer_load_dword v{t0}, v{vFL}, s[{sWS}:{sWS+3}], s{sT3} offen {SC}")
        E("s_waitcnt vmcnt(0)")
        E(f"v_cmp_ne_u32 vcc, s{sTAG}, v{t0}")
        E("s_nop 1")
        E("s_cmp_eq_u64 vcc, 0")
        E(f"s_cbranch_scc1 F_FP{tl}_OK")
        E("s_sleep 1")
        E(f"s_branch F_FP{tl}")
        E(f"F_FP{tl}_OK:")
        k.vm_done = k.nvm - 1
        E("; MK flag")
        nk = nun * ks
        NR = len(ring)
        atok = {}
        E(f"s_add_u32 s{sI1}, s{sAB}, {ltA}")
        if is_g3:
            E(f"s_cmp_eq_u32 s{sRG}, 3"); E(f"s_cselect_b32 s{sI2}, {OOB}, 0")
        def a_issue(n):
            r = ring[n % NR]
            for lt in range(2):
                base = sAB if lt == 0 else sI1
                if n >= 4 or (is_g3 and n >= 20):
                    E(f"s_add_u32 s{sI0}, s{base}, {(n//4)*4096}")
                    if is_g3 and n >= 20: E(f"s_add_u32 s{sI0}, s{sI0}, s{sI2}")
                    base = sI0
                atok[n] = k.vm(f"buffer_load_dwordx4 v[{r+4*lt}:{r+4*lt+3}], v{vL16}, s[{sWS}:{sWS+3}], s{base} offen offset:{(n%4)*1024} {SC}")
        for n in range(NR): a_issue(n)
        late = {}
        SV = None
        for n in range(nk):
            r = ring[n % NR]
            bb = (n % 16) * 8
            k.wait(vm=atok[n], ds=late.get(n // 2))
            for ct in range(2):
                for lt in range(2):
                    d = ACC + (lt*2 + ct)*16
                    E(f"v_mfma_f32_32x32x16_bf16 v[{d}:{d+15}], v[{r+4*lt}:{r+4*lt+3}], a[{bb+4*ct}:{bb+4*ct+3}], v[{d}:{d+15}]")
            if n + NR < nk: a_issue(n + NR)
            if is_g3 and n in (3, 5, 7):
                un = 8 + (n - 3)//2
                late[un] = b_read(un, (un - 8)*16)
            if n == nk - NR + 1:
                r0, r1 = ring[(nk - NR) % NR], ring[(nk - NR + 1) % NR]
                assert r1 == r0 + 8
                SV = r0
                E(f"s_mov_b32 s{sT3}, {ST_OFF}")
                for i in range(4):
                    k.vm(f"buffer_load_dwordx4 v[{SV+4*i}:{SV+4*i+3}], v{vST}, s[{sWS}:{sWS+3}], s{sT3} offen offset:{16*i} {SC}")
        E("; MK astr")
        return SV

    svy = path(True)
    E("s_branch F_RED")
    k.restore(st0)
    E("F_Z:")
    E("RESET_z:")
    svz = path(False)
    if svz != svy:
        E("s_waitcnt vmcnt(0)")
        for i in range(16): E(f"v_mov_b32 v{svy+i}, v{svz+i}")
    E("F_RED:")
    E("RESET_red:")
    SV = svy
    sRT, sCB, sM0B, sO = sXB, sBB, sMX, sWm
    vL16 = 1; XV = 8; vDS, vOUT = 16, 17
    vRW, vRR0, vRR1 = 2, 3, 4
    TQ = [20, 21, 22, 23]
    E(f"v_add_u32 v{vRW}, s{sM0B}, v{vL16}")
    E(f"s_lshl_b32 s{sT1}, s{sW}, 11")
    E(f"v_add_u32 v{vRR0}, s{sT1}, v{vL16}")
    E(f"v_add_u32 v{vRR1}, 0x10000, v{vRR0}")
    E("s_waitcnt lgkmcnt(0)")
    for q in range(16):
        r = ACC + q*4
        E(f"ds_write_b128 v{vRW}, v[{r}:{r+3}] offset:{q*1024}")
    E("s_waitcnt vmcnt(0)")
    oth = [r for r in (32, 40, 48, 56) if r not in (SV, SV + 8)]
    TT = oth[0]; M = oth[1]; G = SV
    E(f"v_lshlrev_b32 v{vDS}, 16, v{vDS}")
    for e in range(8): E(f"v_lshlrev_b32 v{XV+e}, 16, v{XV+e}")
    for e in range(8): E(f"v_sub_f32 v{TT+e}, v{XV+e}, v{SV+2*e}")
    def round_pairs(base):
        for e in range(0, 8, 2): E(f"v_cvt_pk_bf16_f32 v{TQ[e//2]}, v{base+e}, v{base+e+1}")
        for e in range(0, 8, 2):
            E(f"v_lshlrev_b32 v{base+e}, 16, v{TQ[e//2]}")
            E(f"v_and_b32 v{base+e+1}, s{sMASK}, v{TQ[e//2]}")
    round_pairs(TT)
    for e in range(8): E(f"v_mul_f32 v{TT+e}, v{TT+e}, v{SV+2*e+1}")
    round_pairs(TT)
    for e in range(8): E(f"v_mul_f32 v{TT+e}, v{TT+e}, v{vDS}")
    round_pairs(TT)
    E("s_waitcnt lgkmcnt(0)")
    E("s_barrier")
    P = ACC
    for src in (4, 5, 6, 7, 0, 1, 2, 3):
        for hf in range(2):
            r = P + (src ^ 4)*8 + hf*4
            E(f"ds_read_b128 v[{r}:{r+3}], v{vRR0 if src < 4 else vRR1} offset:{(src%4)*16384 + hf*1024}")
    E(f"v_mov_b32 v5, {OOB}")
    E(f"v_cmp_eq_u32 vcc, 0, v0")
    E(f"s_lshl_b32 s{sT0}, s{sCB}, 5"); E(f"s_add_u32 s{sT0}, s{sT0}, s{sRT}")
    E(f"s_cmp_eq_u32 s{sT0}, 31")
    E(f"s_cselect_b32 s{sT0}, {EP_OFF}, {OOB}")
    E(f"v_cndmask_b32 v5, v5, 0, vcc")
    E(f"v_mov_b32 v6, s{sTAG}")
    E(f"buffer_store_dword v6, v5, s[{sWS}:{sWS+3}], s{sT0} offen")
    E("s_waitcnt lgkmcnt(8)")
    for e in range(8): E(f"v_add_f32 v{M+e}, v{P+e}, v{P+8+e}")
    for e in range(8): E(f"v_add_f32 v{G+e}, v{P+16+e}, v{P+24+e}")
    for e in range(8): E(f"v_add_f32 v{M+e}, v{M+e}, v{G+e}")
    round_pairs(M)
    E(f"s_mov_b32 s{sT1}, 0xbfb8aa3b")
    for e in range(8): E(f"v_mul_f32 v{G+e}, s{sT1}, v{M+e}")
    for e in range(8): E(f"v_exp_f32 v{G+e}, v{G+e}")
    E("s_waitcnt lgkmcnt(0)")
    for e in range(8): E(f"v_add_f32 v{P+32+e}, v{P+32+e}, v{P+40+e}")
    for e in range(8): E(f"v_add_f32 v{G+e}, 1.0, v{G+e}")
    for e in range(8): E(f"v_rcp_f32 v{G+e}, v{G+e}")
    for e in range(8): E(f"v_add_f32 v{P+48+e}, v{P+48+e}, v{P+56+e}")
    for e in range(8): E(f"v_add_f32 v{P+32+e}, v{P+32+e}, v{P+48+e}")
    for e in range(8): E(f"v_mul_f32 v{G+e}, v{G+e}, v{M+e}")
    for e in range(8): E(f"v_add_f32 v{TT+e}, v{TT+e}, v{P+32+e}")
    round_pairs(G)
    for e in range(8): E(f"v_fma_f32 v{XV+e}, v{TT+e}, v{G+e}, v{XV+e}")
    for e in range(8):
        if e % 2 == 0 and e > 0: E(f"v_add_u32 v{vOUT}, 0x1000, v{vOUT}")
        E(f"buffer_store_dword v{XV+e}, v{vOUT}, s[{sO}:{sO+3}], 0 offen offset:{(e%2)*2048}")
    E("F_END:")
    E("s_endpgm")
    k.finish()
    return k

def build(path, stamps=False, marks=("b0","pub","uep","grpub","lbok","fin","hh","bpre","flag","astr"), **kw):
    k = gen_f(**kw)
    k.L = [(f"; MARK {marks.index(l[5:])}" if (l.startswith("; MK ") and l[5:] in marks) else l) for l in k.L]
    if stamps: add_stamps(k, 0, "F_END", 20, cyc="_cy" in path)
    hdr = ["; fused single-kernel implementation (generated by my own generator scripts)",
           f"; @launch grid=(256,1,1) block=(512,1,1) lds={LDS_F}"]
    write_file(path, hdr, [k])

if __name__ == "__main__":
    build("h.s")
    build("h1_cy.s", stamps=True, marks=("b0","b1","b2","b3","b4","b5","b6","b7","lastm","fin"))
    build("h2_cy.s", stamps=True, marks=("uep","grpub","lb0","lbok","lbend","fin","cwok","hh","flst","bpre"))
```

```python
HH_OFF   = 0
HS_OFF   = 6 << 20
ST_OFF   = 10 << 20
FL_OFF   = (10 << 20) + (1 << 16)
SG_OFF   = (21 << 19)
GR_OFF   = 11 << 20
CW_OFF   = (23 << 19)
EP_OFF   = 12 << 20
WS_SIZE  = 16 << 20
OOB      = 0x40000000
WB_OFF   = 13 << 20
RF_OFF   = (10 << 20) + (1 << 17)
```

```python
from asmgen import *
from layout import *

XR = 0; BR = 49152; WR = 73728; LM = 147456
L_RST = LM; L_SEG = LM + 512; L_FLG = LM + 2560; L_MRS = LM + 2624; L_CSF = LM + 3648; L_CSB = L_CSF + 3072
LDS_K = L_CSB + 4096
L_GX = L_CSB + 2048; L_HT = BR
KNAME = "recurrent_scan__ssm_conv_s5__glu_gated_reglu__prompt_kernel"

def gen(name=KNAME, SC="sc1", psleep=4, touch=6, ga_at=13, lb_t=12, hs_t=14, hh_pb=3, wearly=(3, 5, 6)):
    k = Kern(name, vgpr=168, agpr=0, sgpr=102)
    E = k
    vXR = [1, 2, 3, 4]; vBR = [5, 6, 7, 8]; vWR = [9, 10]
    vS, vQ, vS2, vQ2 = 12, 13, 14, 15
    vCB = [16, 17, 18, 19]; vCW = [20, 21]; vMK = 22; vONE = 29; vL = 23; vT = [24, 25, 26, 27, 28]
    PA = 30
    pr, pi_ = 42, 43
    FB = 44; NB = 12; ACC = 96; GQ = 160
    sX, sBm, sWm, sWS, sP0, sP1, sP2 = 8, 12, 16, 20, 28, 32, 36
    sW, sRG, sRB, sCS, sROT, sFT0, sTAG, sCWB = 40, 41, 42, 43, 44, 45, 46, 47
    sXB, sBB, sWB, sT3OFF = 48, 49, 50, 51
    sT0, sT1, sT2, sT3 = 52, 53, 54, 55
    sMASK, sRT, sCB, sDUM = 56, 57, 58, 59
    sI0, sI1, sI2, sI3 = 60, 61, 62, 63
    sQ = [84, 85, 86, 87]
    sA3, sA4 = 98, 99
    E("s_cmp_ge_u32 s2, 256")
    E("s_cbranch_scc1 F_END")
    E("s_load_dwordx8 s[64:71], s[0:1], 0")
    E("s_load_dwordx2 s[72:73], s[0:1], 32")
    E("s_load_dwordx4 s[76:79], s[0:1], 80")
    E("s_load_dwordx2 s[82:83], s[0:1], 120")
    E("s_load_dwordx2 s[74:75], s[0:1], 56")
    E("s_load_dwordx4 s[4:7], s[0:1], 40")
    E("s_load_dwordx4 s[24:27], s[0:1], 96")
    E("s_load_dwordx2 s[96:97], s[0:1], 64")
    E(f"v_lshrrev_b32 v{vT[0]}, 6, v0")
    E(f"v_and_b32 v{vL}, 63, v0")
    E(f"v_readfirstlane_b32 s{sW}, v{vT[0]}")
    E(f"s_and_b32 s{sT0}, s2, 7"); E(f"s_lshr_b32 s{sT1}, s2, 3")
    E(f"s_and_b32 s{sRG}, s{sW}, 3")
    E(f"s_lshr_b32 s{sRB}, s{sT0}, 2"); E(f"s_lshl_b32 s{sRB}, s{sRB}, 3")
    E(f"s_and_b32 s{sT2}, s{sT1}, 7"); E(f"s_add_u32 s{sRB}, s{sRB}, s{sT2}")
    E(f"s_and_b32 s{sCS}, s{sT0}, 3"); E(f"s_lshl_b32 s{sCS}, s{sCS}, 2")
    E(f"s_lshr_b32 s{sT2}, s{sT1}, 3"); E(f"s_add_u32 s{sCS}, s{sCS}, s{sT2}")
    E(f"s_lshl_b32 s{sROT}, s{sCS}, 1"); E(f"s_add_u32 s{sROT}, s{sROT}, s{sRB}"); E(f"s_and_b32 s{sROT}, s{sROT}, 7")
    E(f"s_and_b32 s{sT2}, s{sT1}, 3")
    E(f"s_lshl_b32 s{sRT}, s{sT0}, 2"); E(f"s_add_u32 s{sRT}, s{sRT}, s{sT2}")
    E(f"s_lshr_b32 s{sCB}, s{sT1}, 2")
    E(f"s_mul_i32 s{sT2}, s{sCS}, 3")
    E(f"s_lshl_b32 s{sT3}, s{sCS}, 1"); E(f"s_add_u32 s{sT3}, s{sT3}, 11")
    E(f"s_cmp_lt_u32 s{sCS}, 11")
    E(f"s_cselect_b32 s{sFT0}, s{sT2}, s{sT3}")
    E(f"s_cselect_b32 s{sT3OFF}, 0, {OOB}")
    E(f"s_mov_b32 s{sMASK}, 0xffff0000")
    E(f"s_lshl_b32 s{sXB}, s{sRB}, 17"); E(f"s_lshl_b32 s{sT2}, s{sRG}, 15"); E(f"s_add_u32 s{sXB}, s{sXB}, s{sT2}")
    E(f"s_lshl_b32 s{sT2}, s{sRG}, 13")
    E(f"s_cmp_lt_u32 s{sRG}, 3")
    for q in range(3):
        E(f"s_add_u32 s{sT3}, s{sT2}, {WR + q*24576}")
        E(f"s_cmp_lt_u32 s{sRG}, 3")
        E(f"s_cselect_b32 s{sQ[q]}, s{sT3}, {BR + q*8192}")
    E(f"s_mov_b32 s{sQ[3]}, s{sT2}")
    E(f"s_cmp_eq_u32 s{sRG}, 3"); E(f"s_cselect_b32 s{sDUM}, {OOB}, 0")
    def srd(s, lo, n):
        E(f"s_mov_b32 s{s}, s{lo}"); E(f"s_mov_b32 s{s+1}, s{lo+1}"); E(f"s_mov_b32 s{s+2}, {n}"); E(f"s_mov_b32 s{s+3}, 0x00020000")
    E(f"s_cmp_ge_u32 s{sW}, 8")
    E("s_cbranch_scc1 F_L")
    st0 = k.state()
    cnt = [0]
    def lab(p):
        cnt[0] += 1; return f"F_{p}{cnt[0]}"
    SLOT2 = [1, 2, 0, 3]
    NG = 10

    def compute_common():
        E("s_waitcnt lgkmcnt(0)")
        srd(sX, 64, 2097152); srd(sWS, 82, WS_SIZE)
        E(f"s_add_u32 s100, s82, {EP_OFF}"); E("s_addc_u32 s101, s83, 0")
        E(f"s_load_dword s{sTAG}, s[100:101], 0")
        srd(sP0, 66, 1024); srd(sP1, 68, 1024); srd(sP2, 74, 1024)
        srd(sWm, 26, 4194304); srd(sBm, 96, 1024)
        g_, a_, b_ = vT[0], vT[1], vT[2]
        E(f"v_and_b32 v{a_}, 31, v{vL}")
        E(f"s_lshl_b32 s{sT0}, s{sCS}, 6")
        E(f"v_lshl_add_u32 v{b_}, v{a_}, 1, s{sT0}")
        k.vm(f"buffer_load_ushort v{FB}, v{b_}, s[{sP0}:{sP0+3}], 0 offen")
        k.vm(f"buffer_load_ushort v{FB+1}, v{b_}, s[{sP1}:{sP1+3}], 0 offen")
        ptok = k.vm(f"buffer_load_ushort v{FB+2}, v{b_}, s[{sP2}:{sP2+3}], 0 offen")
        E(f"s_lshl_b32 s{sCWB}, s{sCS}, 1"); E(f"s_lshr_b32 s{sT2}, s{sRB}, 3"); E(f"s_add_u32 s{sCWB}, s{sCWB}, s{sT2}")
        E(f"s_lshl_b32 s{sCWB}, s{sCWB}, 14"); E(f"s_add_u32 s{sCWB}, s{sCWB}, {CW_OFF}")
        E(f"v_lshrrev_b32 v{g_}, 5, v{vL}")
        E(f"v_bfe_u32 v{b_}, v{vL}, 1, 3")
        E(f"v_xor_b32 v{b_}, v{b_}, v{g_}")
        E(f"v_lshlrev_b32 v{b_}, 4, v{b_}")
        E(f"v_lshl_add_u32 v{a_}, v{a_}, 7, v{b_}")
        E(f"s_lshl_b32 s{sT0}, s{sRG}, 12")
        E(f"v_add_u32 v{vXR[0]}, s{sT0}, v{a_}")
        E(f"v_add_u32 v{vBR[0]}, {BR}, v{a_}")
        for j in range(1, 4):
            E(f"v_xor_b32 v{vXR[j]}, {j<<5}, v{vXR[0]}")
            E(f"v_xor_b32 v{vBR[j]}, {j<<5}, v{vBR[0]}")
        E(f"v_bfe_u32 v{a_}, v{vL}, 2, 2")
        E(f"v_lshl_add_u32 v{a_}, v{g_}, 3, v{a_}")
        E(f"v_mul_u32_u24 v{a_}, 192, v{a_}")
        E(f"v_bfe_u32 v{b_}, v{vL}, 4, 1")
        E(f"v_lshl_add_u32 v{a_}, v{b_}, 5, v{a_}")
        E(f"v_and_b32 v{b_}, 3, v{vL}")
        E(f"v_lshl_add_u32 v{a_}, v{b_}, 3, v{a_}")
        E(f"v_add_u32 v{vWR[0]}, {WR}, v{a_}")
        E(f"v_add_u32 v{vWR[1]}, {WR + 49152}, v{a_}")
        E(f"v_mov_b32 v{vMK}, s{sMASK}")
        E(f"v_mov_b32 v{vONE}, 0x3f803f80")
        for v in (vS, vQ, vS2, vQ2, *vCB, *vCW): E(f"v_mov_b32 v{v}, 0")
        E("s_waitcnt lgkmcnt(0)")
        E(f"s_mul_i32 s{sTAG}, s{sTAG}, 0x9E3779B1"); E(f"s_add_u32 s{sTAG}, s{sTAG}, 0x7F4A7C15")
        return ptok
    ptok = compute_common()
    E(f"s_cmp_ge_u32 s{sW}, 4")
    E("s_cbranch_scc1 F_Z")
    st1 = k.state()

    def round1(v):
        E(f"v_cvt_pk_bf16_f32 v{v}, v{v}, v{v}")
        E(f"v_and_b32 v{v}, v{vMK}, v{v}")
    def half_add(v, tmp):
        E(f"v_mov_b32 v{tmp}, v{v}")
        E(f"v_permlane32_swap_b32 v{v}, v{tmp}")
        E(f"v_add_f32 v{v}, v{v}, v{tmp}")
    def mfrag(dst, m):
        E(f"v_xor_b32 v{dst+1}, 0x80000000, v{m}")
        E(f"v_lshrrev_b32 v{dst+1}, 16, v{dst+1}")
        E(f"v_lshl_or_b32 v{dst}, v{dst+1}, 16, v{dst+1}")
        E(f"v_mov_b32 v{dst+2}, 0"); E(f"v_mov_b32 v{dst+3}, 0")
    def csfrag2(dst, c, t1):
        E(f"v_and_b32 v{t1}, v{vMK}, v{c}")
        E(f"v_sub_f32 v{c}, v{c}, v{t1}")
        E(f"v_and_b32 v{dst+1}, v{vMK}, v{c}")
        E(f"v_lshrrev_b32 v{t1}, 16, v{t1}")
        E(f"v_or_b32 v{dst}, v{dst+1}, v{t1}")
        E(f"v_sub_f32 v{c}, v{c}, v{dst+1}")
        E(f"v_lshrrev_b32 v{dst+1}, 16, v{c}")
    def rowperm(dst, tmp):
        E(f"v_and_b32 v{dst}, 3, v{vL}")
        E(f"v_bfe_u32 v{tmp}, v{vL}, 3, 2")
        E(f"v_lshl_add_u32 v{dst}, v{tmp}, 2, v{dst}")
        E(f"v_bfe_u32 v{tmp}, v{vL}, 2, 1")
        E(f"v_lshl_add_u32 v{dst}, v{tmp}, 4, v{dst}")
    def lo32_off(dst, tmp):
        E(f"v_lshlrev_b32 v{dst}, 4, v{vL}")
        E(f"v_mov_b32 v{tmp}, {OOB}")
        E(f"v_cmp_gt_u32 vcc, 32, v{vL}")
        E(f"v_cndmask_b32 v{dst}, v{tmp}, v{dst}, vcc")
    def retry(lbl, bad, reload):
        E(f"v_cmp_ne_u32 vcc, 0, v{bad}")
        E("s_nop 1")
        E("s_cmp_eq_u64 vcc, 0")
        E(f"s_cbranch_scc1 {lbl}_OK")
        reload()
        E("s_waitcnt vmcnt(0)")
        E(f"s_branch {lbl}")
        E(f"{lbl}_OK:")
    def sum4_ops(b, a0, a1):
        out = []
        for d in range(4):
            out += [f"v_lshlrev_b32 v{vT[0]}, 16, v{b+d}", f"v_and_b32 v{vT[1]}, v{vMK}, v{b+d}",
                    f"v_add_f32 v{a0}, v{a0}, v{vT[0]}", f"v_add_f32 v{a1}, v{a1}, v{vT[1]}"]
        return out

    def path(isY):
        tl = "Y" if isY else "Z"
        tok = {}
        vM, vRS = vS, vQ
        ar, ai, a16r, a16i, c2r, c2i, asr, asi, w1r, w1i, w2r, w2i = [PA + i for i in range(12)]
        if isY:
            k.wait(vm=ptok)
            RAW = FB; PV = FB + 4; O = PA
            lre, lim, ldt, zr, zi, nn, mg, ph, den, n1, n2 = [PV+i for i in range(11)]
            E(f"v_lshlrev_b32 v{lre}, 16, v{RAW}"); E(f"v_lshlrev_b32 v{lim}, 16, v{RAW+1}"); E(f"v_lshlrev_b32 v{ldt}, 16, v{RAW+2}")
            E(f"v_mul_f32 v{ldt}, 0x3fb8aa3b, v{ldt}")
            E(f"v_exp_f32 v{ldt}, v{ldt}")
            round1(ldt)
            E(f"v_mul_f32 v{zr}, v{ldt}, v{lre}")
            E(f"v_mul_f32 v{zi}, v{ldt}, v{lim}")
            E(f"v_mul_f32 v{zr}, 0x3fb8aa3b, v{zr}")
            E(f"v_mul_f32 v{zi}, 0.15915494309189535, v{zi}")
            E(f"v_lshrrev_b32 v{nn}, 5, v{vL}")
            E(f"s_lshl_b32 s{sT0}, s{sRG}, 1")
            E(f"v_add_u32 v{nn}, s{sT0}, v{nn}")
            E(f"s_sub_u32 s{sT0}, s{sRB}, 1")
            E(f"v_sub_u32 v{n1}, s{sT0}, v{nn}")
            E(f"v_subrev_u32 v{n2}, 8, v{n1}")
            E(f"v_max_i32 v{n1}, 0, v{n1}"); E(f"v_max_i32 v{n2}, 0, v{n2}")
            E(f"v_lshlrev_b32 v{n1}, 7, v{n1}"); E(f"v_lshlrev_b32 v{n2}, 7, v{n2}")
            E(f"v_cvt_f32_u32 v{n1}, v{n1}"); E(f"v_cvt_f32_u32 v{n2}, v{n2}")
            E(f"v_lshlrev_b32 v{nn}, 4, v{nn}")
            E(f"v_cvt_f32_u32 v{nn}, v{nn}")
            for (n, o) in (("1.0", O), ("0x41800000", O+2), (f"v{nn}", O+6), (f"v{n1}", O+8), (f"v{n2}", O+10)):
                E(f"v_mul_f32 v{mg}, {n}, v{zr}")
                E(f"v_mul_f32 v{ph}, {n}, v{zi}")
                E(f"v_exp_f32 v{mg}, v{mg}")
                E(f"v_fract_f32 v{ph}, v{ph}")
                E(f"v_cos_f32 v{o}, v{ph}")
                E(f"v_sin_f32 v{o+1}, v{ph}")
                E(f"v_mul_f32 v{o}, v{o}, v{mg}")
                E(f"v_mul_f32 v{o+1}, v{o+1}, v{mg}")
            E(f"v_mul_f32 v{den}, v{lre}, v{lre}")
            E(f"v_fmac_f32 v{den}, v{lim}, v{lim}")
            E(f"v_rcp_f32 v{den}, v{den}")
            E(f"v_add_f32 v{mg}, -1.0, v{O}")
            E(f"v_mul_f32 v{O+4}, v{mg}, v{lre}")
            E(f"v_fmac_f32 v{O+4}, v{O+1}, v{lim}")
            E(f"v_mul_f32 v{O+5}, v{O+1}, v{lre}")
            E(f"v_fma_f32 v{O+5}, -v{mg}, v{lim}, v{O+5}")
            E(f"v_add_f32 v{den}, v{den}, v{den}")
            E(f"v_mul_f32 v{O+4}, v{O+4}, v{den}")
            E(f"v_mul_f32 v{O+5}, v{O+5}, v{den}")
        else:
            k.wait(vm=ptok)
            E(f"v_mov_b32 v{vT[0]}, {L_FLG}")
            for i in range(2): k.ds(f"ds_write_b128 v{vT[0]}, v[{vS}:{vS+3}] offset:{16*i}")
        if isY: E(f"s_and_b32 s{sT0}, s{sRG}, 1")
        else: E(f"s_add_u32 s{sT0}, s{sRG}, 2")
        E(f"s_lshl_b32 s{sT0}, s{sT0}, 11"); E(f"s_add_u32 s{sCWB}, s{sCWB}, s{sT0}")

        steps = [(t, j) for t in range(16) for j in range(4)]
        bufs = [[FB + 4*i for i in range(5)], [FB + 20 + 4*i for i in range(5)]]
        rtok = {}
        def reads(n):
            t, j = steps[n]; s = t % 3; b = bufs[n % 2]
            hf, ks = j >> 1, j & 1
            wreg, wb = (vWR[0], s*24576) if s < 2 else (vWR[1], 0)
            wb += hf*12288
            tk = [k.ds(f"ds_read_b128 v[{b[0]}:{b[0]+3}], v{vXR[j]} offset:{s*16384}")]
            def wrd(dst, mt, j3):
                for a in range(2):
                    t_ = k.ds(f"ds_read_b64_tr_b16 v[{dst+2*a}:{dst+2*a+1}], v{wreg} offset:{wb + mt*6144 + (16*ks+4*a)*192 + 64*j3}")
                return t_
            if t < 8:
                if isY:
                    for c in range(2): tk.append(k.ds(f"ds_read_b128 v[{b[1+c]}:{b[1+c]+3}], v{vBR[j]} offset:{s*8192 + c*4096}"))
            elif isY:
                for mt in range(2): tk.append(wrd(b[1+mt], mt, 0))
            else:
                for i in range(4): tk.append(wrd(b[1+i], i & 1, 1 + (i >> 1)))
            rtok[n] = tk
        def compute(n, mid=None):
            t, j = steps[n]; b = bufs[n % 2]
            if t < 8 and not isY:
                k.wait(ds=rtok[n][0])
                if mid: mid()
                for d in range(4):
                    E(f"v_dot2c_f32_bf16 v{vS if d%2==0 else vS2}, v{vONE}, v{b[0]+d}")
                    E(f"v_dot2c_f32_bf16 v{vQ if d%2==0 else vQ2}, v{b[0]+d}, v{b[0]+d}")
                return
            nm = 2 if isY else 4
            for i in range(nm):
                k.wait(ds=rtok[n][1+i])
                d = ACC + 16*(i + (2 if (isY and t >= 8) else 0))
                c = "0" if n in (0, 32) else f"v[{d}:{d+15}]"
                if t < 8:
                    E(f"v_mfma_f32_32x32x16_bf16 v[{d}:{d+15}], v[{b[0]}:{b[0]+3}], v[{b[1+i]}:{b[1+i]+3}], {c}")
                else:
                    E(f"v_mfma_f32_32x32x16_bf16 v[{d}:{d+15}], v[{b[1+i]}:{b[1+i]+3}], v[{b[0]}:{b[0]+3}], {c}")
                if i == 0 and mid: mid()
            if t < 8:
                l = lab("cb")
                E(f"s_cmp_eq_u32 s{sRG}, {j}"); E(f"s_cbranch_scc0 {l}")
                for s_ in sum4_ops(b[1], vCB[0], vCB[2]) + sum4_ops(b[2], vCB[1], vCB[3]): E(s_)
                E(f"{l}:")
            if t == 8:
                for i in range(nm):
                    l = lab("cw")
                    E(f"s_cmp_eq_u32 s{sRG}, {i}"); E(f"s_cbranch_scc0 {l}")
                    for s_ in sum4_ops(b[1+i], vCW[0], vCW[1]): E(s_)
                    E(f"{l}:")
        def publish_cw():
            E(f"v_add_f32 v{vCW[0]}, v{vCW[0]}, v{vCW[1]}")
            half_add(vCW[0], vCW[1])
            E(f"v_mov_b32 v{vCW[1]}, s{sTAG}")
            E(f"s_bfe_u32 s{sT1}, s{sROT}, 0x10001"); E(f"s_lshl_b32 s{sT0}, s{sT1}, 10")
            E(f"s_lshr_b32 s{sT1}, s{sROT}, 2"); E(f"s_lshl_b32 s{sT1}, s{sT1}, 9"); E(f"s_add_u32 s{sT0}, s{sT0}, s{sT1}")
            E(f"s_and_b32 s{sT1}, s{sROT}, 1"); E(f"s_lshl_b32 s{sT1}, s{sT1}, 3"); E(f"s_add_u32 s{sT0}, s{sT0}, s{sT1}")
            E(f"s_add_u32 s{sT0}, s{sT0}, s{sCWB}")
            if isY:
                E(f"s_cmp_lt_u32 s{sRG}, 2"); E(f"s_cselect_b32 s{sT0}, s{sT0}, {OOB}")
            lo32_off(vT[0], vT[1])
            k.vm(f"buffer_store_dwordx2 v[{vCW[0]}:{vCW[0]+1}], v{vT[0]}, s[{sWS}:{sWS+3}], s{sT0} offen {SC}")
        def load_gather(track=True):
            E(f"v_lshlrev_b32 v{vT[2]}, 4, v{vL}")
            for i in range(2):
                s_ = f"buffer_load_dwordx4 v[{GQ+4*i}:{GQ+4*i+3}], v{vT[2]}, s[{sWS}:{sWS+3}], s{sCWB} offen offset:{i*1024} {SC}"
                if track: tok['ga'] = k.vm(s_)
                else: E(s_)
        def gather():
            k.wait(vm=tok['ga'])
            E(f"F_GA{tl}:")
            E(f"v_xor_b32 v{vT[0]}, s{sTAG}, v{GQ+1}"); E(f"v_xor_b32 v{vT[1]}, s{sTAG}, v{GQ+3}")
            E(f"v_xor_b32 v{vT[3]}, s{sTAG}, v{GQ+5}"); E(f"v_xor_b32 v{vT[4]}, s{sTAG}, v{GQ+7}")
            E(f"v_or3_b32 v{vT[4]}, v{vT[4]}, v{vT[0]}, v{vT[1]}"); E(f"v_or_b32 v{vT[4]}, v{vT[4]}, v{vT[3]}")
            retry(f"F_GA{tl}", vT[4], lambda: load_gather(False))
            E(f"v_add_f32 v{GQ}, v{GQ}, v{GQ+2}"); E(f"v_add_f32 v{GQ+4}, v{GQ+4}, v{GQ+6}"); E(f"v_add_f32 v{GQ}, v{GQ}, v{GQ+4}")
            csfrag2(GQ+2, GQ, vT[2])
            if isY: E(f"s_and_b32 s{sT0}, s{sRG}, 1")
            else: E(f"s_add_u32 s{sT0}, s{sRG}, 2")
            E(f"s_lshl_b32 s{sT0}, s{sT0}, 9"); E(f"s_add_u32 s{sT0}, s{sT0}, {L_CSF}")
            E(f"v_lshl_add_u32 v{vT[0]}, v{vL}, 3, s{sT0}")
            k.ds(f"ds_write_b64 v{vT[0]}, v[{GQ+2}:{GQ+3}]")
        def barrier(name_):
            k.wait_all_ds()
            E("s_barrier")
            E(f"; MK {name_}")
        R = FB; MF = FB + 16; Rr = FB + 20; CF = FB + 36
        ntile = 2 if isY else 4
        def ysync(lbl, foff, vdata, D, Tq):
            E(f"v_mov_b32 v{vT[3]}, {L_FLG + foff}")
            k.wait_all_ds()
            E(f"{lbl}:")
            E(f"ds_read_b128 v[{Tq}:{Tq+3}], v{vT[3]}")
            for s_ in range(8): E(f"ds_read_b64 v[{D+2*s_}:{D+2*s_+1}], v{vdata} offset:{s_*256}")
            E("s_waitcnt lgkmcnt(8)")
            E(f"v_and_b32 v{Tq}, v{Tq}, v{Tq+1}"); E(f"v_and_b32 v{Tq+2}, v{Tq+2}, v{Tq+3}"); E(f"v_and_b32 v{Tq}, v{Tq}, v{Tq+2}")
            E(f"v_readfirstlane_b32 s{sT0}, v{Tq}")
            E("s_waitcnt lgkmcnt(0)")
            E(f"s_cmp_eq_u32 s{sT0}, 1")
            E(f"s_cbranch_scc0 {lbl}")
        def flag_store(kind):
            E(f"s_lshl_b32 s{sT0}, s{sRB}, 2"); E(f"s_add_u32 s{sT0}, s{sT0}, s{sRG}"); E(f"s_lshl_b32 s{sT0}, s{sT0}, 8")
            E(f"s_lshl_b32 s{sT1}, s{sCS}, 2"); E(f"s_add_u32 s{sT0}, s{sT0}, s{sT1}"); E(f"s_add_u32 s{sT0}, s{sT0}, {FL_OFF + kind*64}")
            E(f"v_mov_b32 v{vT[3]}, {OOB}")
            E(f"v_cmp_eq_u32 vcc, 0, v{vL}")
            E(f"v_mov_b32 v{vT[4]}, s{sTAG}")
            E(f"v_cndmask_b32 v{vT[3]}, v{vT[3]}, 0, vcc")
            k.vm(f"buffer_store_dword v{vT[4]}, v{vT[3]}, s[{sWS}:{sWS+3}], s{sT0} offen {SC}")
        def mlp_epilogue():
            E(f"s_lshl_b32 s{sT2}, s{sRB}, 2"); E(f"s_add_u32 s{sT2}, s{sT2}, s{sRG}"); E(f"s_mul_i32 s{sT3}, s{sT2}, 86")
            E(f"s_lshl_b32 s{sT2}, s{sFT0}, 1"); E(f"s_add_u32 s{sT3}, s{sT3}, s{sT2}"); E(f"s_lshl_b32 s{sT3}, s{sT3}, 10")
            if HH_OFF: E(f"s_add_u32 s{sT3}, s{sT3}, {HH_OFF}")
            E(f"v_mul_f32 v{vS2}, v{vRS}, v{vRS}")
            E(f"v_lshlrev_b32 v{vT[1]}, 4, v{vL}")
            for (j3, at) in ([(0, 2)] if isY else [(1, 0), (2, 2)]):
                G, U = ACC + 16*at, ACC + 16*(at+1)
                for v in range(16): E(f"v_max_f32 v{G+v}, 0, v{G+v}")
                for v in range(16): E(f"v_mul_f32 v{U+v}, v{vS2}, v{U+v}")
                for v in range(16): E(f"v_mul_f32 v{G+v}, v{G+v}, v{U+v}")
                for v in range(0, 16, 2): E(f"v_cvt_pk_bf16_f32 v{U+v//2}, v{G+v}, v{G+v+1}")
                E(f"s_add_u32 s{sT2}, s{sT3}, {j3*2048}")
                if j3 == 2: E(f"s_add_u32 s{sT2}, s{sT2}, s{sT3OFF}")
                for s_ in range(2):
                    tok['hh'] = k.vm(f"buffer_store_dwordx4 v[{U+4*s_}:{U+4*s_+3}], v{vT[1]}, s[{sWS}:{sWS+3}], s{sT2} offen offset:{s_*1024} {SC}")
            E("; MK hh")
        def corr(a):
            d = ACC + 16*(a + (2 if isY else 0))
            E(f"v_mfma_f32_32x32x16_bf16 v[{d}:{d+15}], v[{R+4*a}:{R+4*a+3}], v[{MF}:{MF+3}], v[{d}:{d+15}]")
        def stats_handoff():
            if isY:
                E(f"v_add_f32 v{vCB[0]}, v{vCB[0]}, v{vCB[2]}"); E(f"v_add_f32 v{vCB[1]}, v{vCB[1]}, v{vCB[3]}")
                E(f"s_lshl_b32 s{sT0}, s{sRG}, 9"); E(f"s_add_u32 s{sT0}, s{sT0}, {L_CSB}")
                E(f"v_lshl_add_u32 v{vT[0]}, v{vL}, 3, s{sT0}")
                k.ds(f"ds_write_b64 v{vT[0]}, v[{vCB[0]}:{vCB[0]+1}]")
            else:
                m, rs, t1, t2 = vM, vRS, vS2, vQ2
                E(f"v_add_f32 v{m}, v{vS}, v{vS2}"); E(f"v_add_f32 v{t1}, v{vQ}, v{vQ2}")
                half_add(m, t2); half_add(t1, rs)
                E(f"v_mul_f32 v{m}, 0x3b000000, v{m}")
                E(f"v_mul_f32 v{t1}, 0x3b000000, v{t1}")
                E(f"v_fma_f32 v{t1}, -v{m}, v{m}, v{t1}")
                E(f"v_max_f32 v{t1}, 0, v{t1}")
                round1(m); round1(t1)
                E(f"v_add_f32 v{t1}, 0x3727c5ac, v{t1}")
                round1(t1)
                E(f"v_sqrt_f32 v{t1}, v{t1}")
                round1(t1)
                E(f"v_rcp_f32 v{rs}, v{t1}")
                E(f"v_fma_f32 v{t2}, -v{t1}, v{rs}, 1.0")
                E(f"v_fmac_f32 v{rs}, v{t2}, v{rs}")
                rowperm(vT[1], vT[2])
                E(f"s_lshl_b32 s{sT2}, s{sRG}, 7"); E(f"s_add_u32 s{sT2}, s{sT2}, {L_RST}")
                E(f"v_lshl_add_u32 v{vT[0]}, v{vT[1]}, 2, s{sT2}")
                k.ds(f"ds_write_b32 v{vT[0]}, v{rs}")
                E(f"v_and_b32 v{vT[0]}, 31, v{vL}")
                E(f"s_lshl_b32 s{sT2}, s{sRG}, 8"); E(f"s_add_u32 s{sT2}, s{sT2}, {L_MRS}")
                E(f"v_lshl_add_u32 v{vT[0]}, v{vT[0]}, 3, s{sT2}")
                k.ds(f"ds_write_b64 v{vT[0]}, v[{m}:{m+1}]")
                E(f"v_lshlrev_b32 v{vT[1]}, 3, v{vT[1]}")
                E(f"s_lshr_b32 s{sT0}, s{sXB}, 7"); E(f"s_add_u32 s{sT0}, s{sT0}, {ST_OFF}")
                E(f"s_cmp_eq_u32 s{sCS}, 0"); E(f"s_cselect_b32 s{sT0}, s{sT0}, {OOB}")
                k.vm(f"buffer_store_dwordx2 v[{m}:{m+1}], v{vT[1]}, s[{sWS}:{sWS+3}], s{sT0} offen {SC}")
        def u_epilogue():
            E(f"v_lshlrev_b32 v{vT[1]}, 3, v{vL}")
            E(f"v_add_u32 v{vT[1]}, {L_CSB}, v{vT[1]}")
            for w_ in range(4): k.ds(f"ds_read_b64 v[{R+8+2*w_}:{R+8+2*w_+1}], v{vT[1]} offset:{w_*512}")
            E(f"v_and_b32 v{vT[0]}, 31, v{vL}")
            E(f"s_lshl_b32 s{sT2}, s{sRG}, 8"); E(f"s_add_u32 s{sT2}, s{sT2}, {L_MRS}")
            E(f"v_lshl_add_u32 v{vT[1]}, v{vT[0]}, 3, s{sT2}")
            tk = k.ds(f"ds_read_b64 v[{vM}:{vM+1}], v{vT[1]}")
            E(f"v_lshrrev_b32 v{vT[2]}, 5, v{vL}")
            E(f"s_lshl_b32 s{sT2}, s{sRG}, 7"); E(f"s_add_u32 s{sT2}, s{sT2}, {L_RST}")
            E(f"v_lshl_add_u32 v{vT[1]}, v{vT[2]}, 6, s{sT2}")
            for i in range(4): k.ds(f"ds_read_b128 v[{Rr+4*i}:{Rr+4*i+3}], v{vT[1]} offset:{16*i}")
            for r_0 in (CF+2, CF+3, CF+6, CF+7): E(f"v_mov_b32 v{r_0}, 0")
            k.wait(ds=tk)
            for c in range(2):
                E(f"v_add_f32 v{R+8+c}, v{R+8+c}, v{R+10+c}"); E(f"v_add_f32 v{R+12+c}, v{R+12+c}, v{R+14+c}")
            for c in range(2): E(f"v_add_f32 v{R+8+c}, v{R+8+c}, v{R+12+c}")
            mfrag(MF, vM)
            csfrag2(CF, R+8, vT[3]); csfrag2(CF+4, R+9, vT[3])
            for c in range(2):
                E(f"v_mfma_f32_32x32x16_bf16 v[{ACC+16*c}:{ACC+16*c+15}], v[{MF}:{MF+3}], v[{CF+4*c}:{CF+4*c+3}], v[{ACC+16*c}:{ACC+16*c+15}]")
            E(f"s_lshl_b32 s{sT0}, s{sRG}, 9"); E(f"s_add_u32 s{sT0}, s{sT0}, {L_SEG}")
            E(f"v_lshl_add_u32 v{vT[1]}, v{vT[2]}, 8, s{sT0}")
            E(f"v_lshl_add_u32 v{vT[1]}, v{vT[0]}, 3, v{vT[1]}")
            E(f"s_lshl_b32 s{sT0}, s{sRG}, 1")
            E(f"v_add_u32 v{vCB[0]}, s{sT0}, v{vT[2]}")
            E(f"s_lshl_b32 s{sT0}, s{sRG}, 2"); E(f"s_add_u32 s{sT0}, s{sT0}, {L_FLG}")
            E(f"v_mov_b32 v{vT[3]}, s{sT0}"); E(f"v_mov_b32 v{vT[4]}, 1")
            k.wait_all_ds()
            for v in range(16): E(f"v_mul_f32 v{ACC+v}, v{ACC+v}, v{Rr+v}")
            for v in range(16): E(f"v_mul_f32 v{ACC+16+v}, v{ACC+16+v}, v{Rr+v}")
            er, ei = ACC, ACC+16
            T2 = R + 8
            for v in range(1, 16):
                d = T2 if v % 2 else T2+2
                E(f"v_fma_f32 v{d}, v{ar}, v{er}, v{ACC+v}")
                E(f"v_fma_f32 v{d+1}, v{ar}, v{ei}, v{ACC+16+v}")
                E(f"v_fma_f32 v{d}, -v{ai}, v{ei}, v{d}")
                E(f"v_fmac_f32 v{d+1}, v{ai}, v{er}")
                er, ei = d, d+1
            k.ds(f"ds_write_b64 v{vT[1]}, v[{T2}:{T2+1}]")
            k.ds(f"ds_write_b32 v{vT[3]}, v{vT[4]}")
            E(f"v_lshlrev_b32 v{vT[1]}, 3, v{vT[0]}")
            E(f"v_add_u32 v{vT[1]}, {L_SEG}, v{vT[1]}")
            E(f"v_mov_b32 v{pr}, 0"); E(f"v_mov_b32 v{pi_}, 0")
            ysync("F_YS1", 0, vT[1], Rr, T2+4)
            lo32_off(vT[1], vT[3])
            E(f"s_lshl_b32 s{sT0}, s{sCS}, 4"); E(f"s_add_u32 s{sT0}, s{sT0}, s{sRB}"); E(f"s_lshl_b32 s{sT0}, s{sT0}, 9")
            E(f"s_add_u32 s{sT0}, s{sT0}, {GR_OFF}")
            E(f"s_cmp_eq_u32 s{sRG}, 0")
            E(f"s_cselect_b32 s{sT0}, s{sT0}, {OOB}")
            E(f"v_mov_b32 v{T2+1}, s{sTAG}"); E(f"v_mov_b32 v{T2+3}, s{sTAG}")
            cr, ci = Rr, Rr+1
            for s_ in range(1, 8):
                nr, ni = Rr+2*s_, Rr+2*s_+1
                E(f"v_fmac_f32 v{nr}, v{a16r}, v{cr}")
                E(f"v_fmac_f32 v{ni}, v{a16r}, v{ci}")
                E(f"v_fma_f32 v{nr}, -v{a16i}, v{ci}, v{nr}")
                E(f"v_fmac_f32 v{ni}, v{a16i}, v{cr}")
                cr, ci = nr, ni
            E(f"v_mov_b32 v{T2}, v{cr}"); E(f"v_mov_b32 v{T2+2}, v{ci}")
            k.vm(f"buffer_store_dwordx4 v[{T2}:{T2+3}], v{vT[1]}, s[{sWS}:{sWS+3}], s{sT0} offen {SC}")
            E("; MK grpub")
            for s_ in range(1, 8):
                E(f"v_cmp_eq_u32 vcc, {s_}, v{vCB[0]}")
                E(f"v_cndmask_b32 v{pr}, v{pr}, v{Rr+2*(s_-1)}, vcc")
                E(f"v_cndmask_b32 v{pi_}, v{pi_}, v{Rr+2*(s_-1)+1}, vcc")
        def lookback():
            Q = GQ
            def load_gr():
                E(f"v_lshlrev_b32 v{vT[0]}, 4, v{vL}")
                E(f"s_lshl_b32 s{sT0}, s{sCS}, 13"); E(f"s_lshl_b32 s{sT1}, s{sRG}, 10"); E(f"s_add_u32 s{sT0}, s{sT0}, s{sT1}")
                E(f"s_add_u32 s{sT0}, s{sT0}, {GR_OFF}"); E(f"s_add_u32 s{sT1}, s{sT0}, 4096")
                for i in range(2):
                    E(f"buffer_load_dwordx4 v[{Q+4*i}:{Q+4*i+3}], v{vT[0]}, s[{sWS}:{sWS+3}], s{sT0 if i == 0 else sT1} offen {SC}")
            E(f"s_sub_u32 s{sT3}, s{sRB}, 8")
            E(f"v_and_b32 v{vT[2]}, 31, v{vL}")
            E(f"v_lshl_add_u32 v{vS2}, v{vCB[0]}, 5, v{vT[2]}")
            E(f"v_lshlrev_b32 v{vS2}, 3, v{vS2}")
            E(f"v_add_u32 v{vS2}, {L_GX}, v{vS2}")
            E("RESET_lb:")
            E("F_POLL:")
            load_gr()
            E("s_waitcnt vmcnt(0)")
            for i in (1, 3, 5, 7): E(f"v_xor_b32 v{Q+i}, s{sTAG}, v{Q+i}")
            E(f"v_or_b32 v{Q+1}, v{Q+1}, v{Q+3}"); E(f"v_or_b32 v{Q+5}, v{Q+5}, v{Q+7}")
            E(f"v_cmp_gt_i32 vcc, s{sRB}, v{vCB[0]}")
            for i in (0, 1, 2): E(f"v_cndmask_b32 v{Q+i}, 0, v{Q+i}, vcc")
            E(f"v_cmp_gt_i32 vcc, s{sT3}, v{vCB[0]}")
            for i in (4, 5, 6): E(f"v_cndmask_b32 v{Q+i}, 0, v{Q+i}, vcc")
            E(f"v_or_b32 v{vT[4]}, v{Q+1}, v{Q+5}")
            E(f"v_cmp_ne_u32 vcc, 0, v{vT[4]}")
            E("s_nop 1")
            E("s_cmp_eq_u64 vcc, 0")
            E("s_cbranch_scc1 F_POLL_OK")
            E("s_sleep 2")
            E("s_branch F_POLL")
            E("F_POLL_OK:")
            k.vm_done = k.nvm - 1
            E("; MK lbok")
            gr, gi = R, R+1
            E(f"v_mul_f32 v{gr}, v{w1r}, v{Q}"); E(f"v_mul_f32 v{gi}, v{w1r}, v{Q+2}")
            E(f"v_fma_f32 v{gr}, -v{w1i}, v{Q+2}, v{gr}"); E(f"v_fmac_f32 v{gi}, v{w1i}, v{Q}")
            E(f"v_fmac_f32 v{gr}, v{w2r}, v{Q+4}"); E(f"v_fmac_f32 v{gi}, v{w2r}, v{Q+6}")
            E(f"v_fma_f32 v{gr}, -v{w2i}, v{Q+6}, v{gr}"); E(f"v_fmac_f32 v{gi}, v{w2i}, v{Q+4}")
            E(f"s_lshl_b32 s{sT0}, s{sRG}, 2"); E(f"s_add_u32 s{sT0}, s{sT0}, {L_FLG + 16}")
            E(f"v_mov_b32 v{vT[3]}, s{sT0}"); E(f"v_mov_b32 v{vT[4]}, 1")
            k.ds(f"ds_write_b64 v{vS2}, v[{gr}:{gr+1}]")
            k.ds(f"ds_write_b32 v{vT[3]}, v{vT[4]}")
            E(f"v_lshlrev_b32 v{vT[1]}, 3, v{vT[2]}")
            E(f"v_add_u32 v{vT[1]}, {L_GX}, v{vT[1]}")
            ysync("F_YS2", 16, vT[1], Rr, R+4)
            for st_ in (8, 4, 2):
                for i in range(st_): E(f"v_add_f32 v{Rr+i}, v{Rr+i}, v{Rr+st_+i}")
            gr, gi = Rr, Rr+1
            E(f"v_fmac_f32 v{pr}, v{asr}, v{gr}"); E(f"v_fmac_f32 v{pi_}, v{asr}, v{gi}")
            E(f"v_fma_f32 v{pr}, -v{asi}, v{gi}, v{pr}"); E(f"v_fmac_f32 v{pi_}, v{asi}, v{gr}")
            E(f"v_lshrrev_b32 v{vT[3]}, 5, v{vL}")
            E(f"v_lshlrev_b32 v{vT[3]}, 10, v{vT[3]}")
            E(f"s_lshl_b32 s{sT2}, s{sRG}, 12"); E(f"s_add_u32 s{sT2}, s{sT2}, {L_HT}")
            E(f"v_lshl_add_u32 v{vT[3]}, v{vT[2]}, 1, v{vT[3]}")
            E(f"v_add_u32 v{vT[3]}, s{sT2}, v{vT[3]}")
            hr, hi = pr, pi_
            for v in range(16):
                ur, ui = ACC+v, ACC+16+v
                o1, o2 = FB + 2*(v%4), FB + 2*(v%4) + 1
                E(f"v_fmac_f32 v{ur}, v{ar}, v{hr}"); E(f"v_fmac_f32 v{ui}, v{ar}, v{hi}")
                E(f"v_fma_f32 v{ur}, -v{ai}, v{hi}, v{ur}"); E(f"v_fmac_f32 v{ui}, v{ai}, v{hr}")
                hr, hi = ur, ui
                E(f"v_mul_f32 v{o1}, v{c2r}, v{hr}"); E(f"v_mul_f32 v{o2}, v{c2r}, v{hi}")
                E(f"v_fma_f32 v{o1}, -v{c2i}, v{hi}, v{o1}"); E(f"v_fmac_f32 v{o2}, v{c2i}, v{hr}")
                pk = FB + 8 + v
                E(f"v_cvt_pk_bf16_f32 v{pk}, v{o1}, -v{o2}")
                k.ds(f"ds_write_b16 v{vT[3]}, v{pk} offset:{v*64}")
                k.ds(f"ds_write_b16_d16_hi v{vT[3]}, v{pk} offset:{2048 + v*64}")
            rowperm(vT[0], vT[2])
            E(f"v_lshlrev_b32 v{vT[0]}, 6, v{vT[0]}")
            E(f"v_lshrrev_b32 v{vT[2]}, 5, v{vL}")
            E(f"v_lshl_add_u32 v{vT[0]}, v{vT[2]}, 4, v{vT[0]}")
            E(f"v_add_u32 v{vT[0]}, s{sT2}, v{vT[0]}")
            E(f"v_lshlrev_b32 v{vT[1]}, 4, v{vL}")
            E(f"s_lshl_b32 s{sT0}, s{sRB}, 2"); E(f"s_add_u32 s{sT0}, s{sT0}, s{sRG}"); E(f"s_lshl_b32 s{sT0}, s{sT0}, 16")
            E(f"s_lshl_b32 s{sT1}, s{sCS}, 11"); E(f"s_add_u32 s{sT0}, s{sT0}, s{sT1}"); E(f"s_add_u32 s{sT0}, s{sT0}, {HS_OFF}")
            E(f"s_add_u32 s{sT1}, s{sT0}, 32768")
            O = PA
            OQ = [GQ, GQ+4, PA+2, PA+6]
            for c in range(2):
                for s_ in range(2):
                    o = OQ[2*c+s_]
                    k.ds(f"ds_read_b128 v[{o}:{o+3}], v{vT[0]} offset:{c*2048 + 32*s_}")
            k.wait_all_ds()
            for c in range(2):
                for s_ in range(2):
                    o = OQ[2*c+s_]
                    tok['hs'] = k.vm(f"buffer_store_dwordx4 v[{o}:{o+3}], v{vT[1]}, s[{sWS}:{sWS+3}], s{sT0 if c==0 else sT1} offen offset:{s_*1024} {SC}")
            E("; MK lbend")

        barrier("b0")
        reads(0)
        flush_before = {8} | ({lb_t} if isY else set())
        for n in range(64):
            t, j = steps[n]
            last = (j == 3)
            def mid(n=n):
                if n + 1 < 64 and not (steps[n+1][1] == 0 and steps[n+1][0] in flush_before):
                    if steps[n+1][1] == 0: barrier(f"b{steps[n+1][0]}")
                    reads(n + 1)
            compute(n, mid)
            if last and t + 1 in flush_before:
                if t + 1 == 8: stats_handoff()
                barrier(f"b{t+1}")
                if isY and t + 1 == 8: u_epilogue()
                if isY and t + 1 == lb_t: lookback()
                reads(n + 1)
            if n == 35: publish_cw()
            if n == 4*ga_at: load_gather()
            if n == 57: gather()
            if isY and n == 4*hs_t:
                k.wait(vm=tok['hs']); flag_store(2)
        E("; MK lastm")
        E(f"v_lshlrev_b32 v{vT[1]}, 3, v{vL}")
        E(f"v_add_u32 v{vT[1]}, {L_CSF}, v{vT[1]}")
        for a in range(ntile): tkc = k.ds(f"ds_read_b64 v[{R+4*a}:{R+4*a+1}], v{vT[1]} offset:{(a if isY else a+2)*512}")
        for a in range(ntile): E(f"v_mov_b32 v{R+4*a+2}, 0"); E(f"v_mov_b32 v{R+4*a+3}, 0")
        mfrag(MF, vM)
        k.wait(ds=tkc)
        for a in range(ntile): corr(a)
        barrier("b16")
        mlp_epilogue()

        lt = 0 if isY else 1
        vL16 = 1; vP3 = 2; vP4 = 3; vRD = [4, 5, 6, 7]; vFL = 8
        AR = FB; BFR = 12
        BF = [ACC + 64 + 0]
        BQ = [160, 164, 92, 30, 34, 38, 12, 16]
        t0, t1, t2, t3, t4 = vT
        E(f"v_lshlrev_b32 v{vL16}, 4, v{vL}")
        E(f"v_lshrrev_b32 v{t4}, 5, v{vL}")
        E(f"v_bfe_u32 v{t0}, v{vL}, 2, 2"); E(f"v_lshl_add_u32 v{t0}, v{t4}, 2, v{t0}"); E(f"v_lshlrev_b32 v{t0}, 7, v{t0}")
        E(f"v_bfe_u32 v{t1}, v{vL}, 3, 1"); E(f"v_lshl_add_u32 v{t0}, v{t1}, 6, v{t0}")
        E(f"v_bfe_u32 v{t1}, v{vL}, 4, 1"); E(f"v_lshl_add_u32 v{t0}, v{t1}, 5, v{t0}")
        E(f"v_and_b32 v{t1}, 3, v{vL}"); E(f"v_lshl_add_u32 v{vP3}, v{t1}, 3, v{t0}")
        E(f"v_and_b32 v{t0}, 31, v{vL}"); E(f"v_bfe_u32 v{t1}, v{vL}, 1, 3"); E(f"v_xor_b32 v{t1}, v{t1}, v{t4}")
        E(f"v_lshlrev_b32 v{t1}, 4, v{t1}"); E(f"v_lshl_add_u32 v{vP4}, v{t0}, 7, v{t1}")
        E(f"s_lshl_b32 s{sT0}, s{sRT}, 1");
        if lt: E(f"s_add_u32 s{sT0}, s{sT0}, 1")
        E(f"s_mul_i32 s{sA3}, s{sT0}, 86"); E(f"s_mul_i32 s{sT1}, s{sRG}, 22"); E(f"s_add_u32 s{sA3}, s{sA3}, s{sT1}"); E(f"s_lshl_b32 s{sA3}, s{sA3}, 10")
        if HH_OFF: E(f"s_add_u32 s{sA3}, s{sA3}, {HH_OFF}")
        E(f"s_lshl_b32 s{sA4}, s{sT0}, 16"); E(f"s_lshl_b32 s{sT1}, s{sRG}, 14"); E(f"s_add_u32 s{sA4}, s{sA4}, s{sT1}"); E(f"s_add_u32 s{sA4}, s{sA4}, {HS_OFF}")
        nks = lambda g: 2 if g == 9 else 4
        atok = {}
        def a_ops(g):
            ops = []
            for j in range(nks(g)):
                def op(j=j):
                    r = AR + (g % 3)*16 + 4*j
                    if j == 0:
                        if g >= 4:
                            E(f"s_add_u32 s{sI0}, s{sA3}, {(g-4)*4096}")
                            if g == 9: E(f"s_add_u32 s{sI0}, s{sI0}, s{sDUM}")
                        else: E(f"s_add_u32 s{sI0}, s{sA4}, {g*4096}")
                    atok[(g, j)] = k.vm(f"buffer_load_dwordx4 v[{r}:{r+3}], v{vL16}, s[{sWS}:{sWS+3}], s{sI0} offen offset:{j*1024} {SC}")
                ops.append(op)
            return ops
        XV = AR; SV = AR + 16; vDS, vOUT, vST = 9, 10, 11
        def ep_loads():
            E(f"v_and_b32 v{t0}, 31, v{vL}")
            E(f"v_lshrrev_b32 v{t4}, 5, v{vL}")
            E(f"s_lshl_b32 s{sT0}, s{sRT}, 6")
            if lt: E(f"s_add_u32 s{sT0}, s{sT0}, 32")
            E(f"s_and_b32 s{sT1}, s{sRG}, 1"); E(f"s_lshl_b32 s{sT1}, s{sT1}, 3"); E(f"s_add_u32 s{sT0}, s{sT0}, s{sT1}")
            E(f"s_lshl_b32 s{sT1}, s{sCB}, 6")
            E(f"s_lshr_b32 s{sT2}, s{sRG}, 1"); E(f"s_lshl_b32 s{sT2}, s{sT2}, 5"); E(f"s_add_u32 s{sT1}, s{sT1}, s{sT2}")
            E(f"v_lshl_add_u32 v{t1}, v{t4}, 4, s{sT0}")
            E(f"v_add_u32 v{t2}, s{sT1}, v{t0}")
            E(f"v_lshl_add_u32 v{t3}, v{t1}, 9, v{t2}")
            E(f"v_lshlrev_b32 v{vOUT}, 2, v{t3}")
            E(f"v_lshlrev_b32 v{t3}, 1, v{t3}")
            E(f"v_lshlrev_b32 v{t2}, 1, v{t2}")
            E(f"v_lshlrev_b32 v{vST}, 3, v{t1}")
            k.vm(f"buffer_load_ushort v{vDS}, v{t2}, s[{sBm}:{sBm+3}], 0 offen")
        issued = 0
        for g in range(NG):
            barrier(f"p{g}")
            lim = g + 2 if g >= hh_pb else min(g + 2, 3)
            while issued <= min(lim, NG - 1):
                for op in a_ops(issued): op()
                issued += 1
            q = sQ[SLOT2[g % 4]]
            if g >= 4:
                E(f"v_add_u32 v{vRD[0]}, s{q}, v{vP3}"); E(f"v_xor_b32 v{vRD[1]}, 64, v{vRD[0]}")
            else:
                E(f"v_add_u32 v{vRD[0]}, s{q}, v{vP4}")
                for j in range(1, 4): E(f"v_xor_b32 v{vRD[j]}, {j<<5}, v{vRD[0]}")
            toks = []
            for j in range(nks(g)):
                for ct in range(2):
                    b = BQ[2*j + ct]
                    if g >= 4:
                        for a in range(2):
                            tk = k.ds(f"ds_read_b64_tr_b16 v[{b+2*a}:{b+2*a+1}], v{vRD[ct]} offset:{(16*j+8*a)*128}")
                    else:
                        tk = k.ds(f"ds_read_b128 v[{b}:{b+3}], v{vRD[j]} offset:{ct*4096}")
                    toks.append(tk)
            if g == 0:
                k.wait(vm=tok['hh']); flag_store(0 if isY else 1)
                E("; MK flst")
            nxt = []
            if issued == g + 3 and issued < NG and (issued <= 3 or g >= hh_pb):
                nxt = a_ops(issued); issued += 1
            if g == 7: ep_loads()
            for j in range(nks(g)):
                r = AR + (g % 3)*16 + 4*j
                for ct in range(2):
                    k.wait(vm=atok[(g, j)], ds=toks[2*j+ct])
                    d = ACC + (0 if g >= 4 else 32) + 16*ct
                    b = BQ[2*j + ct]
                    c = "0" if (g in (0, 4) and j == 0) else f"v[{d}:{d+15}]"
                    E(f"v_mfma_f32_32x32x16_bf16 v[{d}:{d+15}], v[{r}:{r+3}], v[{b}:{b+3}], {c}")
                if nxt: nxt.pop(0)()
            while nxt: nxt.pop(0)()
            if g == 7:
                E(f"s_mov_b32 s{sT3}, {ST_OFF}")
                for i in range(4):
                    k.vm(f"buffer_load_dwordx4 v[{SV+4*i}:{SV+4*i+3}], v{vST}, s[{sWS}:{sWS+3}], s{sT3} offen offset:{16*i} {SC}")
            if g == 8:
                for e in range(4): k.vm(f"buffer_load_ushort v{AR+32+e}, v{t3}, s[{sX}:{sX+3}], 0 offen offset:{e*1024}")
                E(f"s_movk_i32 s{sT2}, 0x1000")
                for e in range(4, 8): k.vm(f"buffer_load_ushort v{AR+32+e}, v{t3}, s[{sX}:{sX+3}], s{sT2} offen offset:{(e-4)*1024}")
        E("; MK astr")

    path(True)
    E("s_branch F_RED")
    k.restore(st1)
    E("F_Z:")
    E("RESET_z:")
    path(False)
    E("F_RED:")
    E("RESET_red:")
    AR = FB; XV = AR + 32; SV = AR + 16; TT = AR; M = AR + 8; G = SV
    vL16 = 1; vDS, vOUT = 9, 10; vRW, vRR = 2, 3; TQ = [4, 5, 6, 7]
    sO = sWm
    E(f"s_lshl_b32 s{sT0}, s{sW}, 14")
    E(f"v_add_u32 v{vRW}, s{sT0}, v{vL16}")
    E(f"s_lshr_b32 s{sT0}, s{sW}, 2"); E(f"s_lshl_b32 s{sT0}, s{sT0}, 16"); E(f"s_lshl_b32 s{sT1}, s{sRG}, 11"); E(f"s_add_u32 s{sT0}, s{sT0}, s{sT1}")
    E(f"v_add_u32 v{vRR}, s{sT0}, v{vL16}")
    E("s_waitcnt lgkmcnt(0)")
    E("s_barrier")
    for q in range(16):
        r = ACC + q*4
        E(f"ds_write_b128 v{vRW}, v[{r}:{r+3}] offset:{q*1024}")
    E("s_waitcnt vmcnt(0)")
    E(f"v_lshlrev_b32 v{vDS}, 16, v{vDS}")
    for e in range(8): E(f"v_lshlrev_b32 v{XV+e}, 16, v{XV+e}")
    for e in range(8): E(f"v_sub_f32 v{TT+e}, v{XV+e}, v{SV+2*e}")
    def round_pairs(base):
        for e in range(0, 8, 2): E(f"v_cvt_pk_bf16_f32 v{TQ[e//2]}, v{base+e}, v{base+e+1}")
        for e in range(0, 8, 2):
            E(f"v_lshlrev_b32 v{base+e}, 16, v{TQ[e//2]}")
            E(f"v_and_b32 v{base+e+1}, v{vMK}, v{TQ[e//2]}")
    round_pairs(TT)
    for e in range(8): E(f"v_mul_f32 v{TT+e}, v{TT+e}, v{SV+2*e+1}")
    round_pairs(TT)
    for e in range(8): E(f"v_mul_f32 v{TT+e}, v{TT+e}, v{vDS}")
    round_pairs(TT)
    E("s_waitcnt lgkmcnt(0)")
    E("s_barrier")
    P = ACC
    for gm in range(2):
        for src in range(4):
            for hf in range(2):
                r = P + gm*32 + src*8 + hf*4
                E(f"ds_read_b128 v[{r}:{r+3}], v{vRR} offset:{src*16384 + gm*8192 + hf*1024}")
    E(f"v_mov_b32 v24, {OOB}")
    E(f"v_cmp_eq_u32 vcc, 0, v0")
    E(f"s_lshl_b32 s{sT0}, s{sCB}, 5"); E(f"s_add_u32 s{sT0}, s{sT0}, s{sRT}")
    E(f"s_cmp_eq_u32 s{sT0}, 31")
    E(f"s_cselect_b32 s{sT0}, {EP_OFF}, {OOB}")
    E(f"v_cndmask_b32 v24, v24, 0, vcc")
    E(f"v_mov_b32 v25, s{sTAG}")
    E(f"buffer_store_dword v25, v24, s[{sWS}:{sWS+3}], s{sT0} offen")
    E("s_waitcnt lgkmcnt(8)")
    for e in range(8): E(f"v_add_f32 v{M+e}, v{P+e}, v{P+8+e}")
    for e in range(8): E(f"v_add_f32 v{G+e}, v{P+16+e}, v{P+24+e}")
    for e in range(8): E(f"v_add_f32 v{M+e}, v{M+e}, v{G+e}")
    round_pairs(M)
    E(f"s_mov_b32 s{sT1}, 0xbfb8aa3b")
    for e in range(8): E(f"v_mul_f32 v{G+e}, s{sT1}, v{M+e}")
    for e in range(8): E(f"v_exp_f32 v{G+e}, v{G+e}")
    E("s_waitcnt lgkmcnt(0)")
    for e in range(8): E(f"v_add_f32 v{P+32+e}, v{P+32+e}, v{P+40+e}")
    for e in range(8): E(f"v_add_f32 v{G+e}, 1.0, v{G+e}")
    for e in range(8): E(f"v_rcp_f32 v{G+e}, v{G+e}")
    for e in range(8): E(f"v_add_f32 v{P+48+e}, v{P+48+e}, v{P+56+e}")
    for e in range(8): E(f"v_add_f32 v{P+32+e}, v{P+32+e}, v{P+48+e}")
    for e in range(8): E(f"v_mul_f32 v{G+e}, v{G+e}, v{M+e}")
    for e in range(8): E(f"v_add_f32 v{TT+e}, v{TT+e}, v{P+32+e}")
    round_pairs(G)
    for e in range(8): E(f"v_fma_f32 v{XV+e}, v{TT+e}, v{G+e}, v{XV+e}")
    for e in range(8):
        if e % 2 == 0 and e > 0: E(f"v_add_u32 v{vOUT}, 0x1000, v{vOUT}")
        E(f"buffer_store_dword v{XV+e}, v{vOUT}, s[{sO}:{sO+3}], 0 offen offset:{(e%2)*2048}")
    E("s_branch F_END")

    k.restore(st0)
    E("F_L:")
    E("RESET_l:")
    vXD = [1, 2]; vBD = [3, 4]; vWD = [5, 6, 7]; vD3 = 8
    r_, pos_, g_, a_, b_ = vT
    E(f"v_lshrrev_b32 v{r_}, 3, v{vL}")
    E(f"v_and_b32 v{pos_}, 7, v{vL}")
    E(f"v_lshrrev_b32 v{a_}, 1, v{r_}")
    E(f"v_xor_b32 v{a_}, v{a_}, v{pos_}")
    E(f"v_lshlrev_b32 v{a_}, 4, v{a_}")
    E(f"v_lshl_add_u32 v{vBD[0]}, v{r_}, 10, v{a_}")
    E(f"v_xor_b32 v{vBD[1]}, 64, v{vBD[0]}")
    E(f"v_lshrrev_b32 v{b_}, 2, v{r_}")
    E(f"v_lshlrev_b32 v{b_}, 4, v{b_}")
    E(f"v_and_or_b32 v{b_}, v{r_}, 3, v{b_}")
    E(f"v_lshl_add_u32 v{vXD[0]}, v{b_}, 10, v{a_}")
    E(f"v_xor_b32 v{vXD[1]}, 64, v{vXD[0]}")
    E(f"v_bfe_u32 v{a_}, v{r_}, 1, 1"); E(f"v_lshlrev_b32 v{a_}, 2, v{a_}"); E(f"v_xor_b32 v{a_}, v{a_}, v{pos_}")
    E(f"v_lshlrev_b32 v{a_}, 4, v{a_}"); E(f"v_lshl_add_u32 v{vD3}, v{r_}, 10, v{a_}")
    for ph in range(3):
        E(f"v_add_u32 v{a_}, {64*ph}, v{vL}")
        E(f"v_mul_u32_u24 v{b_}, 0x556, v{a_}")
        E(f"v_lshrrev_b32 v{b_}, 14, v{b_}")
        E(f"v_mul_u32_u24 v{g_}, 12, v{b_}")
        E(f"v_sub_u32 v{a_}, v{a_}, v{g_}")
        E(f"v_mul_u32_u24 v{b_}, 0xac0, v{b_}")
        E(f"v_lshl_add_u32 v{vWD[ph]}, v{a_}, 4, v{b_}")
        E(f"v_cmp_lt_u32 vcc, 7, v{a_}")
        E(f"v_mov_b32 v{g_}, s{sT3OFF}")
        E(f"v_cndmask_b32 v{g_}, 0, v{g_}, vcc")
        E(f"v_add_u32 v{vWD[ph]}, v{vWD[ph]}, v{g_}")
    sMX, sMB, sMW = 98, 99, 100
    E(f"s_lshl_b32 s{sBB}, s{sCS}, 15"); E(f"s_and_b32 s{sT3}, s{sRG}, 1"); E(f"s_lshl_b32 s{sT2}, s{sT3}, 14"); E(f"s_add_u32 s{sBB}, s{sBB}, s{sT2}")
    E(f"s_mul_i32 s{sWB}, s{sT3}, {16*2752}"); E(f"s_lshl_b32 s{sT2}, s{sFT0}, 6"); E(f"s_add_u32 s{sWB}, s{sWB}, s{sT2}")
    E(f"s_lshl_b32 s{sMX}, s{sRG}, 12")
    E(f"s_lshl_b32 s{sMB}, s{sRG}, 11")
    E(f"s_mul_i32 s{sMW}, s{sRG}, 3072")
    E("s_waitcnt lgkmcnt(0)")
    srd(sX, 64, 2097152)
    E(f"s_cmp_lt_u32 s{sRG}, 2")
    E(f"s_cselect_b32 s{sBm}, s70, s72"); E(f"s_cselect_b32 s{sBm+1}, s71, s73"); E(f"s_mov_b32 s{sBm+2}, {512*1024}"); E(f"s_mov_b32 s{sBm+3}, 0x00020000")
    E(f"s_cselect_b32 s{sWm}, s76, s78"); E(f"s_cselect_b32 s{sWm+1}, s77, s79"); E(f"s_mov_b32 s{sWm+2}, {512*2752}"); E(f"s_mov_b32 s{sWm+3}, 0x00020000")
    E(f"s_cselect_b32 s{sP1}, s4, s6"); E(f"s_cselect_b32 s{sP1+1}, s5, s7"); E(f"s_mov_b32 s{sP1+2}, {512*1024}"); E(f"s_mov_b32 s{sP1+3}, 0x00020000")
    srd(sP0, 24, 1376*1024); srd(sWS, 82, WS_SIZE)
    E(f"s_add_u32 s90, s82, {EP_OFF}"); E("s_addc_u32 s91, s83, 0")
    E(f"s_load_dword s{sTAG}, s[90:91], 0")
    ltok = {}
    chunk = lambda t: t if t < 8 else (t - 3) % 8
    def x_issue(t):
        s = t % 3
        E(f"s_add_u32 s{sI0}, s{sROT}, {chunk(t)}"); E(f"s_and_b32 s{sI0}, s{sI0}, 7"); E(f"s_lshl_b32 s{sI0}, s{sI0}, 7")
        E(f"s_add_u32 s{sI1}, s{sI0}, s{sXB}")
        for q in range(4):
            E(f"s_add_u32 m0, s{sMX}, {XR + s*16384 + q*1024}")
            E(f"s_add_u32 s{sI3}, s{sI1}, {q*4096}")
            ltok[('p1', t)] = k.vm(f"buffer_load_dwordx4 v{vXD[q&1]}, s[{sX}:{sX+3}], s{sI3} offen lds")
        if t < 8:
            E(f"s_add_u32 s{sI1}, s{sI0}, s{sBB}")
            for qq in range(2):
                E(f"s_add_u32 m0, s{sMB}, {BR + s*8192 + qq*1024}")
                E(f"s_add_u32 s{sI3}, s{sI1}, {qq*8192}")
                ltok[('p1', t)] = k.vm(f"buffer_load_dwordx4 v{vBD[qq]}, s[{sBm}:{sBm+3}], s{sI3} offen lds")
    def w_issue(t):
        s = t % 3
        E(f"s_add_u32 s{sI0}, s{sROT}, {chunk(t)}"); E(f"s_and_b32 s{sI0}, s{sI0}, 7")
        E(f"s_mul_i32 s{sI2}, s{sI0}, {64*2752}"); E(f"s_add_u32 s{sI2}, s{sI2}, s{sWB}")
        for hf in range(2):
            for ph in range(3):
                E(f"s_add_u32 m0, s{sMW}, {WR + s*24576 + hf*12288 + ph*1024}")
                if hf == 1 and ph == 0: E(f"s_add_u32 s{sI2}, s{sI2}, {32*2752}")
                ltok[('p1', t)] = k.vm(f"buffer_load_dwordx4 v{vWD[ph]}, s[{sWm}:{sWm+3}], s{sI2} offen lds")
    def b_issue(g):
        q = sQ[SLOT2[g % 4]]
        if g >= 4:
            E(f"s_mul_i32 s{sI0}, s{sRG}, {22*16*1024}"); E(f"s_lshl_b32 s{sI1}, s{sCB}, 7"); E(f"s_add_u32 s{sI0}, s{sI0}, s{sI1}")
            E(f"s_add_u32 s{sI0}, s{sI0}, {(g-4)*65536}")
            n = 4 if g == 9 else 8
        else:
            E(f"s_lshl_b32 s{sI0}, s{sCB}, 16"); E(f"s_and_b32 s{sI1}, s{sRG}, 1"); E(f"s_lshl_b32 s{sI1}, s{sI1}, 9"); E(f"s_add_u32 s{sI0}, s{sI0}, s{sI1}")
            E(f"s_add_u32 s{sI0}, s{sI0}, {g*128}")
            n = 8
        for i in range(n):
            E(f"s_add_u32 m0, s{q}, {i*1024}")
            E(f"s_add_u32 s{sI3}, s{sI0}, {i*8192}")
            if g >= 4: ltok[('p2', g)] = k.vm(f"buffer_load_dwordx4 v{vD3}, s[{sP0}:{sP0+3}], s{sI3} offen lds")
            else: ltok[('p2', g)] = k.vm(f"buffer_load_dwordx4 v{vBD[i%2]}, s[{sP1}:{sP1+3}], s{sI3} offen lds")
    def poll(tl, hs):
        t0, t1, t4 = vT[0], vT[1], vT[4]
        E(f"s_cmp_lg_u32 s{sRG}, 0")
        E(f"s_cbranch_scc1 F_FD{tl}")
        E(f"v_lshrrev_b32 v{t4}, 5, v{vL}")
        E(f"v_and_b32 v{t0}, 15, v{vL}"); E(f"v_bfe_u32 v{t1}, v{vL}, 4, 1")
        E(f"v_lshlrev_b32 v{t0}, 2, v{t0}"); E(f"v_lshl_add_u32 v{t0}, v{t1}, 8, v{t0}")
        if hs: E(f"v_add_u32 v9, 128, v{t0}")
        else: E(f"v_lshl_add_u32 v9, v{t4}, 6, v{t0}")
        E(f"s_lshl_b32 s{sT2}, s{sRT}, 9"); E(f"s_add_u32 s{sT2}, s{sT2}, {FL_OFF}")
        E(f"F_FP{tl}:")
        E(f"buffer_load_dword v{t0}, v9, s[{sWS}:{sWS+3}], s{sT2} offen {SC}")
        E("s_waitcnt vmcnt(0)")
        E(f"v_cmp_ne_u32 vcc, s{sTAG}, v{t0}")
        E("s_nop 1")
        E("s_cmp_eq_u64 vcc, 0")
        E(f"s_cbranch_scc1 F_FD{tl}")
        E(f"s_sleep {psleep}")
        E(f"s_branch F_FP{tl}")
        E(f"F_FD{tl}:")
    def do_touch():
        E(f"v_lshlrev_b32 v{vT[0]}, 4, v{vL}")
        E(f"s_lshl_b32 s{sT0}, s2, 2"); E(f"s_add_u32 s{sT0}, s{sT0}, s{sRG}")
        E(f"s_mul_i32 s{sT1}, s{sT0}, 1376")
        k.vm(f"buffer_load_dwordx4 v[32:35], v{vT[0]}, s[{sP0}:{sP0+3}], s{sT1} offen")
        k.vm(f"buffer_load_dwordx4 v[36:39], v{vT[0]}, s[{sP0}:{sP0+3}], s{sT1} offen offset:384")
        E(f"s_lshl_b32 s{sT1}, s2, 1"); E(f"s_and_b32 s{sT2}, s{sRG}, 1"); E(f"s_add_u32 s{sT1}, s{sT1}, s{sT2}"); E(f"s_lshl_b32 s{sT1}, s{sT1}, 10")
        k.vm(f"buffer_load_dwordx4 v[40:43], v{vT[0]}, s[{sP1}:{sP1+3}], s{sT1} offen")
    x_issue(0); x_issue(1)
    E("s_waitcnt lgkmcnt(0)")
    E(f"s_mul_i32 s{sTAG}, s{sTAG}, 0x9E3779B1"); E(f"s_add_u32 s{sTAG}, s{sTAG}, 0x7F4A7C15")
    for t in range(17):
        if t < 16: k.wait(vm=ltok[('p1', t)])
        E("s_barrier")
        E(f"; MK b{t}")
        if t + 2 < 8 or 11 <= t + 2 < 16: x_issue(t + 2)
        if t in wearly: w_issue(8 + wearly.index(t))
        if 11 <= t + 2 < 16: w_issue(t + 2)
        if t == touch: do_touch()
        if t == 14: b_issue(0)
        if t == 15: b_issue(1)
        if t == 16:
            poll("A", True)
    for g in range(NG):
        k.wait(vm=ltok[('p2', g)])
        if g == hh_pb: poll("B", False)
        E("s_barrier")
        E(f"; MK p{g}")
        if g == 0: b_issue(2); b_issue(3)
        if g >= 1 and g + 3 < NG: b_issue(g + 3)
    E("s_barrier")
    E("s_barrier")
    E("F_END:")
    E("s_endpgm")
    k.finish()
    return k

def build(path, stamps=False, marks=(), **kw):
    k = gen(**kw)
    k.L = [(f"; MARK {marks.index(l[5:])}" if (l.startswith("; MK ") and l[5:] in marks) else l) for l in k.L]
    if stamps: add_stamps(k, 0, "F_END", 20, cyc="_cy" in path, nw=12)
    write_file(path, ["; fused single-kernel implementation (generated by my own generator scripts)",
                      f"; @launch grid=(256,1,1) block=(768,1,1) lds={LDS_K}"], [k])

if __name__ == "__main__":
    MA = ("b0","b4","b8","b9","b12","b13","b16","p0","p4","astr")
    MB = ("grpub","lbok","lbend","hh","flst","p1","p3","p5","p7","p9")
    build("l7a.s", stamps=True, marks=MA)
    build("l7b.s", stamps=True, marks=MB)
    build("l7c.s", stamps=True, marks=MA, wearly=(2, 4, 5))
    build("l7d.s", stamps=True, marks=MA, wearly=(5, 6, 7), touch=9)
```
